```python
import torch

def _softmax(x, axis=-1):
    return torch.softmax(x, dim=axis)
def _gelu(x):
    return torch.nn.functional.gelu(x, approximate="tanh")
def _silu(x):
    return torch.nn.functional.silu(x)
def _sigmoid(x):
    return torch.sigmoid(x)
def _layernorm(x, axis=-1, eps=1e-5):
    m = x.mean(dim=axis, keepdim=True)
    v = x.var(dim=axis, keepdim=True, unbiased=False)
    return (x - m) / torch.sqrt(v + eps)
def _scatter_add(tgt, idx, src, axis=0):
    return tgt.clone().index_add_(axis, idx, src)
def _segment_sum(src, seg, n):
    out = torch.zeros((n,) + src.shape[1:], dtype=src.dtype)
    return out.index_add_(0, seg, src)
def _pad(x, pw):
    flat = tuple(v for pair in reversed(pw) for v in pair)
    return torch.nn.functional.pad(x, flat)

kernel_name = 'concat_heads__spectral_gfnet__ssm_conv_s5__prompt'

def setup_inputs():

    _w = (lambda a: (lambda t: t.to(torch.bfloat16) if t.is_floating_point() else t)(torch.as_tensor(a)))
    def _A_setup():
        B, S, D = 1, 2048, 1024
        Df = D // 2 + 1
        return {
            "x": _w((lambda *s: torch.randn(*s, dtype=torch.bfloat16) * 0.05)(B, S, D)),
            "w_r": _w((lambda *s: torch.randn(*s, dtype=torch.bfloat16) * 0.8)(S, Df) * 0.02),
            "w_i": _w((lambda *s: torch.randn(*s, dtype=torch.bfloat16) * 0.8)(S, Df) * 0.02),
        }
    _A_in = _A_setup()

    def _B_setup():
        B, S, D = 1, 2048, 1024
        P = D
        Lambda_re = -0.5 * (lambda _x: torch.exp(torch.as_tensor(_x)))((lambda *s: torch.randn(*s, dtype=torch.bfloat16) * 0.2)(P))
        Lambda_im = (lambda *s: torch.randn(*s, dtype=torch.bfloat16) * 0.4)(P) * 1.0
        B_re = (lambda *s: torch.randn(*s, dtype=torch.bfloat16) * 0.2)(P, D) * (D ** -0.5)
        B_im = (lambda *s: torch.randn(*s, dtype=torch.bfloat16) * 0.2)(P, D) * (D ** -0.5)
        C_re = (lambda *s: torch.randn(*s, dtype=torch.bfloat16) * 0.2)(D, P) * (P ** -0.5)
        C_im = (lambda *s: torch.randn(*s, dtype=torch.bfloat16) * 0.2)(D, P) * (P ** -0.5)
        log_dt = (lambda *s: torch.randn(*s, dtype=torch.bfloat16) * 0.2)(P) * 0.3 - 2.0
        Dskip = (lambda *s: torch.randn(*s, dtype=torch.bfloat16) * 0.05)(D)
        return {
            "x": _w((lambda *s: torch.randn(*s, dtype=torch.bfloat16) * 0.05)(B, S, D)),
            "Lambda_re": _w(Lambda_re),
            "Lambda_im": _w(Lambda_im),
            "B_re": _w(B_re),
            "B_im": _w(B_im),
            "C_re": _w(C_re),
            "C_im": _w(C_im),
            "log_dt": _w(log_dt),
            "Dskip": _w(Dskip),
        }
    _B_in = _B_setup()

    return {
        "A_x": _A_in["x"],
        "A_w_r": _A_in["w_r"],
        "A_w_i": _A_in["w_i"],
        "B_x": _B_in["x"],
        "B_Lambda_re": _B_in["Lambda_re"],
        "B_Lambda_im": _B_in["Lambda_im"],
        "B_B_re": _B_in["B_re"],
        "B_B_im": _B_in["B_im"],
        "B_C_re": _B_in["C_re"],
        "B_C_im": _B_in["C_im"],
        "B_log_dt": _B_in["log_dt"],
        "B_Dskip": _B_in["Dskip"],
    }

def reference(A_x, A_w_r, A_w_i, B_x, B_Lambda_re, B_Lambda_im, B_B_re, B_B_im, B_C_re, B_C_im, B_log_dt, B_Dskip):
    def _A_ref(x, w_r, w_i):
        B, S, D = x.shape
        X = (lambda x, axes=(-2,-1): torch.fft.rfft2(x.float(), dim=axes))(x, axes=(-2, -1))
        W = w_r + 1j * w_i
        X = X * W
        y = (lambda x, s, axes=(-2,-1): torch.fft.irfft2(x, s=s, dim=axes).to(torch.bfloat16))(X, (S, D), axes=(-2, -1))
        return y

    def _B_ref(x, Lambda_re, Lambda_im, B_re, B_im, C_re, C_im, log_dt, Dskip):
        Bsz, L, H = x.shape
        Lam = Lambda_re + 1j * Lambda_im
        Bmat = B_re + 1j * B_im
        Cmat = C_re + 1j * C_im
        dt = torch.exp(log_dt)
        Lam_bar = torch.exp(dt * Lam)
        B_bar = ((Lam_bar - 1.0) / Lam)[:, None] * Bmat
        Bu = torch.einsum("bld,pd->blp", x + 0j, B_bar)
        h = torch.zeros_like(Bu[:, 0, :])
        hs = []
        for t in range(L):
            h = Lam_bar[None, :] * h + Bu[:, t, :]
            hs.append(h)
        hseq = torch.stack(hs, 1)
        y = 2.0 * torch.einsum("blp,dp->bld", hseq, Cmat).real + x * Dskip[None, None, :]
        return y

    a = _A_ref(A_x, A_w_r, A_w_i)
    b = _B_ref(B_x, B_Lambda_re, B_Lambda_im, B_B_re, B_B_im, B_C_re, B_C_im, B_log_dt, B_Dskip)
    return torch.concatenate([a, b], axis=-1)
```

```python
import re

REG_RE = re.compile(r"^(-|abs\()?([vas])(?:(\d+)|\[(\d+):(\d+)\])\)?$")
TRANS = ("v_exp_f32", "v_log_f32", "v_rcp_f32", "v_rsq_f32", "v_sqrt_f32", "v_sin_f32", "v_cos_f32")


def regs_of(op):
    op = op.strip()
    if op == "vcc":
        return {("s", "vcc")}
    if op == "exec":
        return {("s", "exec")}
    if op == "m0":
        return {("s", "m0")}
    m = REG_RE.match(op)
    if not m:
        return set()
    k = m.group(2)
    if m.group(3) is not None:
        return {(k, int(m.group(3)))}
    return {(k, i) for i in range(int(m.group(4)), int(m.group(5)) + 1)}


def split_ops(s):
    out, depth, cur = [], 0, ""
    for ch in s:
        if ch == "[":
            depth += 1
        elif ch == "]":
            depth -= 1
        if ch == "," and depth == 0:
            out.append(cur.strip())
            cur = ""
        else:
            cur += ch
    if cur.strip():
        out.append(cur.strip())
    return out


class Ins:
    def __init__(self, text):
        self.text = text
        t = text.split(";")[0].strip()
        self.label = None
        self.mn = None
        self.defs = set()
        self.uses = set()
        self.kind = None
        self.srcc = set()
        self.srcab = set()
        self.mods = ""
        self.target = None
        if not t or t.startswith("."):
            self.kind = "dir"
            return
        if t.endswith(":"):
            self.label = t[:-1]
            self.kind = "label"
            return
        p = t.split(None, 1)
        mn = p[0]
        self.mn = mn
        rest = p[1] if len(p) > 1 else ""
        ops = split_ops(rest)
        if ops:
            last = ops[-1].split()
            ops[-1] = last[0]
            self.mods = " ".join(last[1:])
        self.ops = ops
        R = [regs_of(o) for o in ops]
        U = lambda idx: set().union(*[R[i] for i in idx]) if idx else set()
        n = len(ops)
        base = re.sub(r"_(e32|e64|dpp)$", "", mn)
        self.base = base
        if base.startswith("v_mfma"):
            self.kind = "mfma"
            self.defs = R[0]
            self.srcab = R[1] | R[2]
            self.srcc = R[3]
            self.uses = self.srcab | self.srcc
            self.passes = 8 if "32x32x16" in base else 4 if "16x16x32" in base else None
            assert self.passes, base
        elif base.startswith("v_"):
            self.kind = "valu"
            if base in ("v_swap_b32", "v_permlane32_swap_b32", "v_permlane16_swap_b32"):
                self.defs = R[0] | R[1]
                self.uses = R[0] | R[1]
            elif base in ("v_add_co_u32", "v_sub_co_u32", "v_addc_co_u32"):
                self.defs = R[0] | R[1]
                self.uses = U(range(2, n))
            elif base == "v_nop":
                pass
            else:
                self.defs = R[0]
                self.uses = U(range(1, n))
                if base.startswith("v_fmac") or base == "v_writelane_b32":
                    self.uses |= R[0]
        elif base.startswith(("buffer_load", "global_load")):
            self.kind = "vmem"
            if "lds" in self.mods.split() or "_lds_" in base:
                self.uses = U(range(n)) | {("s", "m0")}
                self.ldsdma = True
            else:
                self.defs = R[0]
                self.uses = U(range(1, n))
        elif base.startswith(("buffer_store", "global_store", "buffer_atomic", "global_atomic")):
            self.kind = "vmem"
            self.uses = U(range(n))
            if base.startswith("buffer_"):
                self.sdata = R[0]
                if "atomic" in base and "sc0" in self.mods.split():
                    self.defs = R[0]
            else:
                if "atomic" in base and "sc0" in self.mods.split():
                    self.defs = R[0]
                    self.uses = U(range(1, n))
                    self.sdata = R[2]
                else:
                    self.sdata = R[1]
            self.wide = base.endswith(("x3", "x4"))
        elif base.startswith(("buffer_wbl2", "buffer_inv")):
            self.kind = "vmem"
        elif base.startswith("ds_"):
            self.kind = "ds"
            if base.startswith(("ds_read", "ds_bpermute", "ds_permute", "ds_swizzle")) or "_rtn" in base:
                self.defs = R[0]
                self.uses = U(range(1, n))
            else:
                self.uses = U(range(n))
        elif base.startswith("s_"):
            self.kind = "salu"
            if base in ("s_branch",) or base.startswith("s_cbranch"):
                self.target = ops[0]
                if "vcc" in base:
                    self.uses = {("s", "vcc")}
            elif base.startswith(("s_cmp", "s_waitcnt", "s_nop", "s_barrier", "s_endpgm", "s_setprio", "s_sleep", "s_bitcmp")):
                self.uses = U(range(n)) if base.startswith(("s_cmp", "s_bitcmp")) else set()
            else:
                self.defs = R[0] if n else set()
                self.uses = U(range(1, n))
                if "saveexec" in base:
                    self.defs |= {("s", "exec")}
        else:
            raise ValueError("unknown instruction: " + text)

    def states(self):
        if self.kind in ("dir", "label"):
            return 0
        if self.base == "s_nop":
            return int(self.ops[0], 0) + 1
        return 1


def vec(rs):
    return {r for r in rs if r[0] in "va"}


def sca(rs):
    return {r for r in rs if r[0] == "s"}


def need(p, c):
    n = 0
    pk, ck = p.kind, c.kind
    if pk == "valu":
        vd = vec(p.defs)
        sd = sca(p.defs)
        if ck == "mfma" and vd & c.uses:
            n = max(n, 2)
        if ck == "valu":
            if c.base in ("v_readfirstlane_b32", "v_readlane_b32") and vd & c.uses:
                n = max(n, 1)
            if c.base.startswith("v_permlane") and vd & c.uses:
                n = max(n, 2)
            if ("dpp" in c.mods or "row_" in c.mods or "quad_perm" in c.mods) and vd & c.uses:
                n = max(n, 2)
            if sd & c.uses:
                n = max(n, 4 if c.base in ("v_readlane_b32", "v_writelane_b32") else 2)
            if p.base in TRANS and vd & c.uses:
                n = max(n, 1)
        if ck == "vmem" and sd & c.uses:
            n = max(n, 5)
        if ck == "salu" and sd & c.uses:
            n = max(n, 1)
    if pk == "mfma":
        big = {4: 8, 8: 12}[p.passes]
        ovl = {4: 6, 8: 10}[p.passes]
        war = {4: 3, 8: 7}[p.passes]
        if ck == "mfma":
            if p.defs & c.srcab:
                n = max(n, big)
            if p.defs & c.srcc:
                if not (p.defs == c.srcc and p.passes == c.passes):
                    n = max(n, ovl)
            elif p.defs & c.defs:
                n = max(n, ovl)
        elif ck in ("valu", "vmem", "ds"):
            if p.defs & (c.uses | c.defs):
                n = max(n, big)
            if ck == "valu" and p.srcc & c.defs:
                n = max(n, war)
    if pk == "salu" and ("s", "m0") in p.defs and ck == "vmem" and getattr(c, "ldsdma", False):
        n = max(n, 1)
    if pk == "vmem" and getattr(p, "wide", False) and p.sdata & c.defs:
        n = max(n, 2 if ck == "valu" else 1)
    if pk == "ds" and p.base in ("ds_write_b128", "ds_write_b96") and vec(p.uses) & c.defs and ck == "valu":
        n = max(n, 1)
    return n


MAXD = 20


def pad(lines):
    ins = [Ins(l) for l in lines]
    changed = True
    total = 0
    while changed:
        changed = False
        def mkjumps():
            jumps = {}
            for i, x in enumerate(ins):
                if x.target is not None:
                    jumps.setdefault(x.target, []).append(i)
            return jumps
        jumps = mkjumps()
        i = 0
        while i < len(ins):
            c = ins[i]
            if c.kind in ("dir", "label"):
                i += 1
                continue
            worst = 0
            stack = [(i - 1, 0)]
            seen = set()
            while stack:
                j, d = stack.pop()
                while j >= 0 and d < MAXD:
                    if (j, d) in seen:
                        break
                    seen.add((j, d))
                    p = ins[j]
                    if p.kind == "label":
                        for b in jumps.get(p.label, []):
                            stack.append((b, d))
                        k = j - 1
                        while k >= 0 and ins[k].kind in ("dir", "label"):
                            if ins[k].kind == "label":
                                for b in jumps.get(ins[k].label, []):
                                    stack.append((b, d))
                            k -= 1
                        if k >= 0 and ins[k].mn in ("s_branch", "s_endpgm", "s_setpc_b64"):
                            break
                        j = k
                        continue
                    if p.kind == "dir":
                        j -= 1
                        continue
                    r = need(p, c)
                    if r > d:
                        worst = max(worst, r - d)
                    d += p.states()
                    j -= 1
            if worst > 0:
                total += worst
                new = []
                w = worst
                while w > 0:
                    k = min(w, 16)
                    new.append(Ins(f"s_nop {k-1}"))
                    w -= k
                ins[i:i] = new
                changed = True
                jumps = mkjumps()
                i += len(new)
            i += 1
    return [x.text for x in ins], total


class Asm:
    def __init__(self):
        self.lines = []

    def __call__(self, s):
        for l in s.split("\n"):
            l = l.strip()
            if l:
                self.lines.append(l)

    def label(self, name):
        self.lines.append(name + ":")


def v(a, n=1):
    return f"v{a}" if n == 1 else f"v[{a}:{a+n-1}]"


def s(a, n=1):
    return f"s{a}" if n == 1 else f"s[{a}:{a+n-1}]"


def kdesc(name, vgpr=256, sgpr=102, accum=None):
    accum = accum or min(256, (vgpr + 3) // 4 * 4)
    return f""".section .rodata,"a"
.p2align 6
.amdhsa_kernel {name}
  .amdhsa_next_free_vgpr {vgpr}
  .amdhsa_next_free_sgpr {sgpr}
  .amdhsa_accum_offset {accum}
  .amdhsa_group_segment_fixed_size 0
  .amdhsa_kernarg_size 120
  .amdhsa_user_sgpr_count 2
  .amdhsa_user_sgpr_kernarg_segment_ptr 1
  .amdhsa_system_sgpr_workgroup_id_x 1
.end_amdhsa_kernel
.text"""


class VmCounter:
    def __init__(self, A):
        self.A = A
        self.issued = []

    def op(self, text, tag=None):
        self.A(text)
        self.issued.append(tag)

    def wait_for(self, tag, emit=True):
        idx = max(i for i, t in enumerate(self.issued) if t == tag)
        n = len(self.issued) - 1 - idx
        assert n <= 63, n
        if emit:
            self.A(f"s_waitcnt vmcnt({n})")
        return n
```

```python
import os, struct, math
import numpy as np
STAMP = int(os.environ.get("STAMP", "0"))
WS_NONCE = 0
WS_EG = 0x10000
WS_HT = 0x100000
WS_Z1 = 0x1000000
WS_Z3 = 0x1400000
WS_WT = 0x1800000
WS_STAMP = 0x2800000
SPIN_MAX = 200000
TBL_PERM = 0
TBL_F = 2048
TBL_T = TBL_F + 8192
TBL_TT = TBL_T + 8192
TBL_END = TBL_TT + 8192

NMARK = 10
def stamp_begin(A):
    if STAMP:
        A("s_memrealtime s[96:97]")
        A("s_memtime s[70:71]")
        for i in range(1, NMARK):
            A(f"s_mov_b64 s[{70+2*i}:{71+2*i}], 0")

def mark(A, i, wait=True):
    if STAMP:
        A(f"s_memtime s[{70+2*i}:{71+2*i}]")
        if wait:
            A("s_waitcnt lgkmcnt(0)")

def stamp_end(A, kidx, swave):
    if STAMP:
        A("s_waitcnt vmcnt(0) lgkmcnt(0)")
        A("s_memrealtime s[98:99]")
        A(f"s_memtime s[{70+2*(NMARK-1)}:{71+2*(NMARK-1)}]")
        A("s_load_dwordx2 s[94:95], s[0:1], 112")
        A(f"s_lshl_b32 s93, s2, 4\ns_add_u32 s93, s93, s{swave}\ns_lshl_b32 s93, s93, 6\ns_add_u32 s93, s93, {WS_STAMP + kidx*0x100000}")
        A("s_waitcnt lgkmcnt(0)")
        A("v_mov_b32 v0, s96\nv_mov_b32 v1, s97\nv_mov_b32 v2, s98\nv_mov_b32 v3, s99\nv_mov_b32 v16, s93")
        for i in range(NMARK):
            A(f"v_mov_b32 v{4+i}, s{70+2*i}")
        for q in range(4):
            A(f"global_store_dwordx4 v16, v[{4*q}:{4*q+3}], s[94:95] offset:{16*q}")

_pc = [0]
def table_base(A, sreg, name):
    _pc[0] += 1
    lab = f"L_pc{_pc[0]}"
    A(f"s_getpc_b64 s[{sreg}:{sreg+1}]")
    A.label(lab)
    A(f"s_add_u32 s{sreg}, s{sreg}, tables-{lab}")
    A(f"s_addc_u32 s{sreg+1}, s{sreg+1}, 0")

def bf16_bits(x):
    u = struct.unpack("<I", struct.pack("<f", x))[0]
    return ((u + 0x7FFF + ((u >> 16) & 1)) >> 16) & 0xFFFF
def f32_bits(x):
    return struct.unpack("<I", struct.pack("<f", x))[0]

def tables():
    w = np.zeros(TBL_END//4, dtype=np.uint32)
    def put(off, chunk, lane, j, val):
        w[(off + chunk*1024 + lane*16)//4 + j] = val
    for l in range(64):
        n, h = l & 31, l >> 5
        for u in range(2):
            for jj in range(4):
                val = 0
                if n == 16*h + 4*u + jj: val = 0x3F80
                if n == 16*h + 8 + 4*u + jj: val = 0x3F800000
                put(TBL_PERM, u, l, jj, val)
        for s_ in range(4):
            for q in range(4):
                m = 8*s_ + 4*h + q
                th = 2*math.pi*((n*m) % 32)/32
                c, sn = math.cos(th), math.sin(th)
                if abs(c) < 1e-12: c = 0.0
                if abs(sn) < 1e-12: sn = 0.0
                put(TBL_F, s_, l, q, bf16_bits(c) | bf16_bits(sn) << 16)
                put(TBL_F, 4+s_, l, q, bf16_bits(-sn) | bf16_bits(c) << 16)
                th = 2*math.pi*(n*m)/1024
                put(TBL_T, s_, l, q, f32_bits(math.cos(th)))
                put(TBL_T, 4+s_, l, q, f32_bits(-math.sin(th)))
                th = 2*math.pi*(n + 32*m)/2048
                put(TBL_TT, s_, l, q, f32_bits(math.cos(th)))
                put(TBL_TT, 4+s_, l, q, f32_bits(-math.sin(th)))
    L = [".p2align 8", ".type tables,@object", "tables:"]
    for i in range(0, len(w), 8):
        L.append(".long " + ",".join(hex(int(x)) for x in w[i:i+8]))
    L.append(f".size tables, {TBL_END}")
    return "\n".join(L)
```

```python
from asmlib import *
from common import *

MF = "v_mfma_f32_32x32x16_bf16"
N0 = "neg_lo:[1,0,0] neg_hi:[1,0,0]"


def load_tbl(A, dst, off, nchunk, vlane16, sbase, vtmp):
    for c in range(nchunk):
        o = off + c*1024
        if c % 4 == 0:
            A(f"v_add_u32 v{vtmp}, {o}, v{vlane16}")
        A(f"global_load_dwordx4 {v(dst+4*c,4)}, v{vtmp}, s[{sbase}:{sbase+1}] offset:{(c % 4)*1024}")


def stage1(A, F, src, D):
    for c in range(2):
        for s_ in range(4):
            cc = "0" if s_ == 0 else v(D+16*c, 16)
            A(f"{MF} {v(D+16*c,16)}, {v(src+4*s_,4)}, {v(F+16*c+4*s_,4)}, {cc}")


def twiddle(A, T, D, dst, tmp):
    for k in range(8):
        re, im, tr, ti = D+2*k, D+16+2*k, T+2*k, T+16+2*k
        t = tmp + 4*(k & 1)
        A(f"v_pk_mul_f32 {v(t,2)}, {v(re,2)}, {v(tr,2)}")
        A(f"v_pk_mul_f32 {v(t+2,2)}, {v(re,2)}, {v(ti,2)}")
        A(f"v_pk_fma_f32 {v(t,2)}, {v(im,2)}, {v(ti,2)}, {v(t,2)} {N0}")
        A(f"v_pk_fma_f32 {v(t+2,2)}, {v(im,2)}, {v(tr,2)}, {v(t+2,2)}")
        A(f"v_cvt_pk_bf16_f32 v{dst+2*k}, v{t}, v{t+2}")
        A(f"v_cvt_pk_bf16_f32 v{dst+2*k+1}, v{t+1}, v{t+3}")


def stage2(A, F, src, D):
    for c in range(2):
        for s_ in range(4):
            cc = "0" if s_ == 0 else v(D+16*c, 16)
            A(f"{MF} {v(D+16*c,16)}, {v(F+16*c+4*s_,4)}, {v(src+4*s_,4)}, {cc}")


def prologue(A, name, ntask_wg):
    A(f".globl {name}\n.p2align 8\n.type {name},@function")
    A.label(name)
    A(f"s_cmp_ge_u32 s2, {ntask_wg}")
    A(f"s_cbranch_scc1 L_{name}_end")
    stamp_begin(A)
    A("v_lshrrev_b32 v2, 6, v0\nv_and_b32 v1, 63, v0\nv_readfirstlane_b32 s20, v2")


def epilogue(A, name, kidx):
    stamp_end(A, kidx, 20)
    A.label(f"L_{name}_end")
    A("s_endpgm")
    return kdesc(name, 256)


F, T = 192, 224


def task_a1(A, sg, slds):
    PITCH = 4352
    A(f"s_and_b32 s44, s{sg}, 31\ns_lshr_b32 s45, s{sg}, 5\ns_lshl_b32 s45, s45, 7\ns_add_u32 s44, s44, s45\ns_lshl_b32 s44, s44, 12")
    A("s_add_u32 s24, s4, s44\ns_addc_u32 s25, s5, 0\ns_sub_u32 s26, 0x400000, s44\ns_mov_b32 s27, 0x20000")
    A("v_lshlrev_b32 v2, 4, v1")
    for q in range(4):
        for c in range(2):
            A(f"s_add_u32 m0, s{slds}, {q*PITCH + c*2176}")
            A(f"s_mov_b32 s48, {q*131072 + c*2048}")
            for u in range(2):
                A(f"buffer_load_dwordx4 v2, s[24:27], s48 offen offset:{u*1024} lds")
    load_tbl(A, F, TBL_F, 8, 2, 52, 3)
    load_tbl(A, T, TBL_T, 8, 2, 52, 3)
    A("v_bfe_u32 v4, v1, 2, 1\nv_mul_u32_u24 v4, 2176, v4")
    A("v_bfe_u32 v5, v1, 3, 1\nv_lshl_add_u32 v4, v5, 6, v4")
    A("v_lshrrev_b32 v5, 5, v1\nv_lshl_add_u32 v4, v5, 8, v4")
    A("v_bfe_u32 v5, v1, 4, 1\nv_lshl_add_u32 v4, v5, 5, v4")
    A("v_and_b32 v5, 3, v1\nv_lshl_add_u32 v4, v5, 3, v4")
    A(f"v_add_u32 v4, s{slds}, v4")
    A("v_and_b32 v5, 31, v1\nv_lshlrev_b32 v5, 4, v5\nv_lshrrev_b32 v6, 5, v1\nv_lshl_add_u32 v5, v6, 11, v5")
    A(f"s_lshl_b32 s44, s{sg}, 14\ns_add_u32 s44, s44, {WS_Z1}")
    A("s_add_u32 s28, s18, s44\ns_addc_u32 s29, s19, 0\ns_mov_b32 s30, 0x4000\ns_mov_b32 s31, 0x20000")
    IN = lambda q: 8 + 16*(q & 1)
    D1 = lambda q: 40 + 32*(q & 1)
    OUT = 128
    MID, TMP, D2 = 104, 120, None

    def rd(q):
        for s_ in range(4):
            for u in range(2):
                A(f"ds_read_b64_tr_b16 {v(IN(q)+4*s_+2*u,2)}, v4 offset:{q*PITCH + s_*512 + u*128}")
    A("s_waitcnt vmcnt(0)")
    rd(0)
    rd(1)
    A("s_waitcnt lgkmcnt(8)")
    stage1(A, F, IN(0), D1(0))
    for q in range(4):
        if q + 1 < 4:
            A("s_waitcnt lgkmcnt(0)")
            stage1(A, F, IN(q+1), D1(q+1))
        if q + 2 < 4:
            rd(q+2)
        twiddle(A, T, D1(q), MID, TMP)
        stage2(A, F, MID, D1(q))
        for i in range(16):
            A(f"v_cvt_pk_bf16_f32 v{OUT+4*i+q}, v{D1(q)+i}, v{D1(q)+16+i}")
    for i in range(16):
        if i % 4 == 0:
            A(f"s_mov_b32 s48, {(i >> 2)*4096}")
        A(f"buffer_store_dwordx4 {v(OUT+4*i,4)}, v5, s[28:31], s48 offen offset:{(i & 3)*512}")


def gen_a1(A, name, kidx):
    prologue(A, name, 256)
    A("s_load_dwordx2 s[4:5], s[0:1], 0\ns_load_dwordx2 s[18:19], s[0:1], 112")
    table_base(A, 52, name)
    A("s_mov_b32 s21, 0\ns_waitcnt lgkmcnt(0)")
    task_a1(A, 2, 21)
    return epilogue(A, name, kidx)


def task_wt(A, sg, slds):
    NB = 2048*513*2
    A(f"s_mov_b32 s24, s8\ns_mov_b32 s25, s9\ns_mov_b32 s26, {NB}\ns_mov_b32 s27, 0x20000")
    A(f"s_mov_b32 s28, s10\ns_mov_b32 s29, s11\ns_mov_b32 s30, {NB}\ns_mov_b32 s31, 0x20000")
    A(f"s_and_b32 s44, s{sg}, 7")
    A(f"s_bfe_u32 s45, s{sg}, 0x10003")
    A(f"s_bfe_u32 s46, s{sg}, 0x20004")
    A(f"s_lshr_b32 s47, s{sg}, 6")
    A("s_lshr_b32 s48, s44, 1\ns_lshl_b32 s48, s48, 3\ns_lshl_b32 s49, s45, 2\ns_add_u32 s48, s48, s49")
    A("s_and_b32 s49, s44, 1\ns_lshl_b32 s49, s49, 1\ns_add_u32 s48, s48, s49\ns_lshl_b32 s48, s48, 5")
    A("s_lshl_b32 s49, s46, 3\ns_add_u32 s48, s48, s49\ns_mul_i32 s48, s48, 1026")
    A("s_lshl_b32 s49, s47, 8\ns_add_u32 s48, s48, s49")
    A("v_bfe_u32 v2, v1, 4, 1\nv_mul_u32_u24 v2, 32832, v2")
    A("v_lshrrev_b32 v3, 5, v1\ns_mov_b32 s49, 1050624\nv_mul_lo_u32 v3, s49, v3")
    A("v_and_b32 v4, 15, v1\nv_lshl_add_u32 v2, v4, 4, v2\nv_add_u32 v2, v2, v3")
    for b in range(8):
        for arr in range(2):
            A(f"s_add_u32 m0, s{slds}, {b*2064 + arr*1024}")
            if arr == 0:
                A(f"s_add_u32 s49, s48, {b*1026}")
            else:
                A("s_nop 0")
            A(f"buffer_load_dwordx4 v2, s[{24+4*arr}:{27+4*arr}], s49 offen lds")
    A("v_and_b32 v3, 7, v1\nv_mul_u32_u24 v4, 2064, v3\nv_lshrrev_b32 v5, 3, v1\nv_lshl_add_u32 v4, v5, 4, v4")
    A(f"v_add_u32 v4, s{slds}, v4")
    A("v_lshlrev_b32 v5, 16, v5\nv_lshl_add_u32 v5, v3, 4, v5")
    A("s_lshl_b32 s48, s47, 20\ns_lshl_b32 s49, s44, 10\ns_add_u32 s48, s48, s49\ns_lshl_b32 s49, s45, 9\ns_add_u32 s48, s48, s49")
    A("s_lshl_b32 s49, s46, 7\ns_add_u32 s48, s48, s49")
    A(f"s_add_u32 s49, s48, {WS_WT}\ns_add_u32 s32, s18, s49\ns_addc_u32 s33, s19, 0\ns_sub_u32 s34, 0x400000, s48\ns_mov_b32 s35, 0x20000")
    A("s_mov_b32 s46, 0x05040100\ns_mov_b32 s47, 0x07060302")
    A("s_waitcnt vmcnt(0)")
    R = lambda rnd, arr, kind: 8 + rnd*32 + (arr*4 + kind)*4
    for rnd in range(2):
        for arr in range(2):
            for kind in range(4):
                A(f"ds_read_b128 {v(R(rnd,arr,kind),4)}, v4 offset:{arr*1024 + kind*256 + rnd*128}")
    for rnd in range(2):
        A(f"s_waitcnt lgkmcnt({8*(1-rnd)})")
        for kap in range(8):
            o = 72 + 4*(rnd*8 + kap)
            for e in range(2):
                for h2 in range(2):
                    kind = e + 2*h2
                    sel = "s46" if kap % 2 == 0 else "s47"
                    A(f"v_perm_b32 v{o+2*e+h2}, v{R(rnd,1,kind)+kap//2}, v{R(rnd,0,kind)+kap//2}, {sel}")
            A(f"s_mov_b32 s48, {(64*rnd + kap)*8192}")
            A(f"buffer_store_dwordx4 {v(o,4)}, v5, s[32:35], s48 offen")


def task_wsp(A, sg):
    NB = 2048*513*2
    A(f"s_mov_b32 s24, s8\ns_mov_b32 s25, s9\ns_mov_b32 s26, {NB}\ns_mov_b32 s27, 0x20000")
    A(f"s_mov_b32 s28, s10\ns_mov_b32 s29, s11\ns_mov_b32 s30, {NB}\ns_mov_b32 s31, 0x20000")
    A(f"s_and_b32 s44, s{sg}, 7\ns_lshr_b32 s45, s{sg}, 3")
    A("s_lshr_b32 s48, s44, 1\ns_lshl_b32 s48, s48, 3\ns_and_b32 s49, s44, 1\ns_lshl_b32 s49, s49, 1\ns_add_u32 s48, s48, s49\ns_lshl_b32 s48, s48, 5")
    A("v_and_b32 v2, 31, v1\nv_lshrrev_b32 v3, 5, v1\nv_lshl_add_u32 v2, v3, 7, v2\nv_add_u32 v2, s48, v2")
    A("s_lshl_b32 s46, s45, 10\ns_movk_i32 s47, 1026")
    n = 0
    for e in range(2):
        for h2 in range(2):
            A(f"v_add_u32 v4, {32*e + 1024*h2}, v2")
            A("v_sub_u32 v5, 2048, v4\nv_and_b32 v5, 2047, v5")
            A("v_mul_lo_u32 v4, s47, v4\nv_mul_lo_u32 v5, s47, v5")
            b = 8 + 4*n
            A(f"buffer_load_ushort v{b}, v4, s[24:27], s46 offen")
            A(f"buffer_load_ushort v{b+1}, v4, s[28:31], s46 offen")
            A(f"buffer_load_ushort v{b+2}, v5, s[24:27], s46 offen")
            A(f"buffer_load_ushort v{b+3}, v5, s[28:31], s46 offen")
            n += 1
    A("s_sub_u32 s45, 513, s45\ns_lshl_b32 s45, s45, 13\ns_lshl_b32 s44, s44, 10\ns_add_u32 s45, s45, s44")
    A(f"s_add_u32 s45, s45, {WS_WT}\ns_add_u32 s32, s18, s45\ns_addc_u32 s33, s19, 0\ns_mov_b32 s34, 0x400\ns_mov_b32 s35, 0x20000")
    A("v_lshlrev_b32 v6, 4, v1")
    A("s_waitcnt vmcnt(0)")
    for n in range(4):
        b = 8 + 4*n
        for r in range(4):
            A(f"v_lshlrev_b32 v{b+r}, 16, v{b+r}")
        A(f"v_add_f32 v{b}, v{b}, v{b+2}\nv_sub_f32 v{b+1}, v{b+1}, v{b+3}")
        A(f"v_mul_f32 v{b}, 0.5, v{b}\nv_mul_f32 v{b+1}, 0.5, v{b+1}")
        A(f"v_cvt_pk_bf16_f32 v{24+n}, v{b}, v{b+1}")
    A("buffer_store_dwordx4 v[24:27], v6, s[32:35], 0 offen")


def gen_wt(A, name, kidx):
    prologue(A, name, 272)
    A("s_load_dwordx4 s[8:11], s[0:1], 8\ns_load_dwordx2 s[18:19], s[0:1], 112")
    A("s_mov_b32 s21, 0\ns_waitcnt lgkmcnt(0)")
    A("s_cmp_ge_u32 s2, 256")
    A(f"s_cbranch_scc1 L_{name}_sp")
    task_wt(A, 2, 21)
    A(f"s_branch L_{name}_fin")
    A.label(f"L_{name}_sp")
    A("s_sub_u32 s22, s2, 256")
    task_wsp(A, 22)
    A.label(f"L_{name}_fin")
    return epilogue(A, name, kidx)


def task_a2(A, sk):
    A(f"s_add_u32 s24, s18, {WS_Z1}\ns_addc_u32 s25, s19, 0\ns_mov_b32 s26, 0x400000\ns_mov_b32 s27, 0x20000")
    A(f"s_add_u32 s28, s18, {WS_Z3}\ns_addc_u32 s29, s19, 0\ns_mov_b32 s30, 0x400000\ns_mov_b32 s31, 0x20000")
    A(f"s_cmp_eq_u32 s{sk}, 0\ns_cselect_b32 s44, 513, s{sk}\ns_lshl_b32 s44, s44, 13\ns_add_u32 s44, s44, {WS_WT}")
    A("s_add_u32 s32, s18, s44\ns_addc_u32 s33, s19, 0\ns_mov_b32 s34, 0x2000\ns_mov_b32 s35, 0x20000")
    A("v_and_b32 v2, 31, v1\nv_lshlrev_b32 v2, 14, v2\nv_lshrrev_b32 v3, 5, v1\nv_lshl_add_u32 v2, v3, 19, v2")
    A(f"s_lshl_b32 s44, s{sk}, 4\ns_sub_u32 s45, 1024, s{sk}\ns_and_b32 s45, s45, 1023\ns_lshl_b32 s45, s45, 4")
    A("v_add_u32 v3, s45, v2\nv_add_u32 v2, s44, v2")
    INU, INV = 8, 24
    DU, DV = 40, 72
    W = 104
    TT = 136
    TMP = 168
    for s_ in range(4):
        A(f"s_mov_b32 s48, {s_ << 20}")
        A(f"buffer_load_dwordx4 {v(INU+4*s_,4)}, v2, s[24:27], s48 offen")
        A(f"buffer_load_dwordx4 {v(INV+4*s_,4)}, v3, s[24:27], s48 offen")
    A("v_lshlrev_b32 v4, 4, v1")
    load_tbl(A, F, TBL_F, 8, 4, 52, 5)
    load_tbl(A, T, TBL_T, 8, 4, 52, 5)
    load_tbl(A, TT, TBL_TT, 8, 4, 52, 5)
    for it in range(8):
        if it % 4 == 0:
            A(f"s_mov_b32 s48, {it*1024}")
        A(f"buffer_load_dwordx4 {v(W+4*it,4)}, v4, s[32:35], s48 offen offset:{(it & 3)*1024}")
    A("s_waitcnt vmcnt(24)")
    for i in range(16):
        A(f"v_xor_b32 v{INV+i}, 0x80000000, v{INV+i}")
    stage1(A, F, INU, DU)
    stage1(A, F, INV, DV)
    A("s_waitcnt vmcnt(16)")
    twiddle(A, T, DU, INU, TMP)
    stage2(A, F, INU, DU)
    twiddle(A, T, DV, INV, TMP)
    stage2(A, F, INV, DV)
    A("s_waitcnt vmcnt(0)")
    for it in range(8):
        w = W + 4*it
        r1, i1, r2, i2 = TMP, TMP+2, TMP+4, TMP+6
        for e in range(2):
            A(f"v_lshlrev_b32 v{r1+e}, 16, v{w+2*e}\nv_and_b32 v{i1+e}, 0xffff0000, v{w+2*e}")
            A(f"v_lshlrev_b32 v{r2+e}, 16, v{w+2*e+1}\nv_and_b32 v{i2+e}, 0xffff0000, v{w+2*e+1}")
        Ar, Ai, Dr, Di = TMP+8, TMP+10, r1, i1
        A(f"v_pk_add_f32 {v(Ar,2)}, {v(r1,2)}, {v(r2,2)}")
        A(f"v_pk_add_f32 {v(Ai,2)}, {v(i1,2)}, {v(i2,2)}")
        A(f"v_pk_add_f32 {v(Dr,2)}, {v(r1,2)}, {v(r2,2)} neg_lo:[0,1] neg_hi:[0,1]")
        A(f"v_pk_add_f32 {v(Di,2)}, {v(i1,2)}, {v(i2,2)} neg_lo:[0,1] neg_hi:[0,1]")
        Ur, Ui, Vr, Vi = DU+2*it, DU+16+2*it, DV+2*it, DV+16+2*it
        rho, sg = TT+2*it, TT+16+2*it
        G1r, G1i, G2r, G2i = r2, i2, TMP+12, TMP+14
        A(f"v_pk_mul_f32 {v(G1r,2)}, {v(sg,2)}, {v(Ur,2)}")
        A(f"v_pk_mul_f32 {v(G1i,2)}, {v(sg,2)}, {v(Ui,2)}")
        A(f"v_pk_mul_f32 {v(G2r,2)}, {v(sg,2)}, {v(Vr,2)}")
        A(f"v_pk_mul_f32 {v(G2i,2)}, {v(sg,2)}, {v(Vi,2)}")
        A(f"v_pk_fma_f32 {v(G1r,2)}, {v(rho,2)}, {v(Vi,2)}, {v(G1r,2)} {N0}")
        A(f"v_pk_fma_f32 {v(G1i,2)}, {v(rho,2)}, {v(Vr,2)}, {v(G1i,2)}")
        A(f"v_pk_fma_f32 {v(G2r,2)}, {v(rho,2)}, {v(Ui,2)}, {v(G2r,2)} {N0}")
        A(f"v_pk_fma_f32 {v(G2i,2)}, {v(rho,2)}, {v(Ur,2)}, {v(G2i,2)}")
        Or, Oi, Pr, Pi = TMP+16, TMP+18, TMP+20, TMP+22
        A(f"v_pk_mul_f32 {v(Or,2)}, {v(Ar,2)}, {v(Ur,2)}")
        A(f"v_pk_mul_f32 {v(Oi,2)}, {v(Ar,2)}, {v(Ui,2)}")
        A(f"v_pk_mul_f32 {v(Pr,2)}, {v(Ar,2)}, {v(Vr,2)}")
        A(f"v_pk_mul_f32 {v(Pi,2)}, {v(Ar,2)}, {v(Vi,2)}")
        A(f"v_pk_fma_f32 {v(Or,2)}, {v(Ai,2)}, {v(Ui,2)}, {v(Or,2)} {N0}")
        A(f"v_pk_fma_f32 {v(Oi,2)}, {v(Ai,2)}, {v(Ur,2)}, {v(Oi,2)}")
        A(f"v_pk_fma_f32 {v(Pr,2)}, {v(Ai,2)}, {v(Vi,2)}, {v(Pr,2)} {N0}")
        A(f"v_pk_fma_f32 {v(Pi,2)}, {v(Ai,2)}, {v(Vr,2)}, {v(Pi,2)}")
        A(f"v_pk_fma_f32 {v(Or,2)}, {v(Dr,2)}, {v(G1r,2)}, {v(Or,2)}")
        A(f"v_pk_fma_f32 {v(Oi,2)}, {v(Dr,2)}, {v(G1i,2)}, {v(Oi,2)}")
        A(f"v_pk_fma_f32 {v(Pr,2)}, {v(Dr,2)}, {v(G2r,2)}, {v(Pr,2)} {N0}")
        A(f"v_pk_fma_f32 {v(Pi,2)}, {v(Dr,2)}, {v(G2i,2)}, {v(Pi,2)} {N0}")
        A(f"v_pk_fma_f32 {v(Or,2)}, {v(Di,2)}, {v(G1i,2)}, {v(Or,2)} {N0}")
        A(f"v_pk_fma_f32 {v(Oi,2)}, {v(Di,2)}, {v(G1r,2)}, {v(Oi,2)}")
        A(f"v_pk_fma_f32 {v(Pr,2)}, {v(Di,2)}, {v(G2i,2)}, {v(Pr,2)}")
        A(f"v_pk_fma_f32 {v(Pi,2)}, {v(Di,2)}, {v(G2r,2)}, {v(Pi,2)} {N0}")
        for e in range(2):
            A(f"v_cvt_pk_bf16_f32 v{INU+2*it+e}, v{Oi+e}, v{Or+e}")
            A(f"v_cvt_pk_bf16_f32 v{INV+2*it+e}, v{Pi+e}, v{Pr+e}")
    stage1(A, F, INU, DU)
    stage1(A, F, INV, DV)
    twiddle(A, T, DU, INU, TMP)
    stage2(A, F, INU, DU)
    twiddle(A, T, DV, INV, TMP)
    stage2(A, F, INV, DV)
    for i in range(16):
        A(f"v_cvt_pk_bf16_f32 v{INU+i}, v{DU+i}, v{DU+16+i}")
    for s_ in range(4):
        A(f"s_mov_b32 s48, {s_ << 20}")
        A(f"buffer_store_dwordx4 {v(INU+4*s_,4)}, v2, s[28:31], s48 offen")
    for i in range(16):
        A(f"v_cvt_pk_bf16_f32 v{INV+i}, -v{DV+i}, v{DV+16+i}")
    for s_ in range(4):
        A(f"s_mov_b32 s48, {s_ << 20}")
        A(f"buffer_store_dwordx4 {v(INV+4*s_,4)}, v3, s[28:31], s48 offen")


def gen_a2(A, name, kidx):
    prologue(A, name, 257)
    A("s_load_dwordx2 s[18:19], s[0:1], 112")
    table_base(A, 52, name)
    A("s_and_b32 s44, s2, 7\ns_lshr_b32 s45, s2, 3\ns_lshl_b32 s44, s44, 5\ns_add_u32 s44, s44, s45")
    A("s_cmp_eq_u32 s2, 256\ns_cselect_b32 s44, 256, s44")
    A("s_lshl_b32 s22, s44, 1\ns_add_u32 s22, s22, s20")
    A("s_waitcnt lgkmcnt(0)")
    A("s_cmp_gt_u32 s22, 512")
    A(f"s_cbranch_scc1 L_{name}_fin")
    task_a2(A, 22)
    A.label(f"L_{name}_fin")
    return epilogue(A, name, kidx)


def task_a3(A, sg):
    A(f"s_lshl_b32 s44, s{sg}, 14\ns_add_u32 s44, s44, {WS_Z3}")
    A("s_add_u32 s24, s18, s44\ns_addc_u32 s25, s19, 0\ns_mov_b32 s26, 0x4000\ns_mov_b32 s27, 0x20000")
    A("v_and_b32 v2, 31, v1\nv_lshrrev_b32 v3, 5, v1\nv_lshlrev_b32 v5, 4, v2\nv_lshl_add_u32 v5, v3, 11, v5")
    IN = 8
    for s_ in range(4):
        A(f"s_mov_b32 s48, {s_*4096}")
        for q in range(4):
            A(f"buffer_load_dwordx4 {v(IN+16*s_+4*q,4)}, v5, s[24:27], s48 offen offset:{q*512}")
    A("v_lshlrev_b32 v4, 4, v1")
    load_tbl(A, F, TBL_F, 8, 4, 52, 6)
    load_tbl(A, T, TBL_T, 8, 4, 52, 6)
    A(f"s_and_b32 s44, s{sg}, 31\ns_lshr_b32 s45, s{sg}, 5\ns_lshl_b32 s45, s45, 7\ns_add_u32 s44, s44, s45\ns_lshl_b32 s44, s44, 14")
    A("s_add_u32 s28, s14, s44\ns_addc_u32 s29, s15, 0\ns_sub_u32 s30, 0x1000000, s44\ns_mov_b32 s31, 0x20000")
    A("v_lshlrev_b32 v7, 2, v2\nv_lshl_add_u32 v7, v3, 9, v7")
    A("s_waitcnt vmcnt(16)")
    for s_ in range(4):
        for a in range(4):
            for b in range(a+1, 4):
                A(f"v_swap_b32 v{IN+16*s_+4*a+b}, v{IN+16*s_+4*b+a}")
    A("s_waitcnt vmcnt(0)")
    A("s_mov_b32 s46, 0x35000000\ns_mov_b32 s47, 0x35000000")
    for k in range(16):
        A(f"v_pk_mul_f32 {v(T+2*k,2)}, s[46:47], {v(T+2*k,2)}")
    D1 = lambda q: 72 + 32*(q & 1)
    MID, TMP, O = 136, 152, 160

    def st1(q):
        for c in range(2):
            for s_ in range(4):
                cc = "0" if s_ == 0 else v(D1(q)+16*c, 16)
                A(f"{MF} {v(D1(q)+16*c,16)}, {v(IN+16*s_+4*q,4)}, {v(F+16*c+4*s_,4)}, {cc}")
    st1(0)
    for q in range(4):
        if q + 1 < 4:
            st1(q+1)
        twiddle(A, T, D1(q), MID, TMP)
        stage2(A, F, MID, D1(q))
        A(f"s_mov_b32 s48, {q*32*16384}\ns_mov_b32 s49, {q*32*16384 + 8192}")
        for i in range(16):
            o = O + 2*i
            A(f"v_cvt_pk_bf16_f32 v{o+1}, v{D1(q)+16+i}, v{D1(q)+i}")
            A(f"v_lshlrev_b32 v{o}, 16, v{o+1}\nv_and_b32 v{o+1}, 0xffff0000, v{o+1}")
            off = (i >> 2)*1024 + (i & 3)*128
            A(f"buffer_store_dword v{o}, v7, s[28:31], s48 offen offset:{off}")
            A(f"buffer_store_dword v{o+1}, v7, s[28:31], s49 offen offset:{off}")


def gen_a3(A, name, kidx):
    prologue(A, name, 256)
    A("s_load_dwordx2 s[14:15], s[0:1], 96\ns_load_dwordx2 s[18:19], s[0:1], 112")
    table_base(A, 52, name)
    A("s_waitcnt lgkmcnt(0)")
    task_a3(A, 2)
    return epilogue(A, name, kidx)


PARTS = {
    "a1": ("a1_kernel", gen_a1, 256, 64, 17408),
    "wt": ("wt_kernel", gen_wt, 272, 64, 16640),
    "a2": ("a2_kernel", gen_a2, 257, 128, 0),
    "a3": ("a3_kernel", gen_a3, 256, 64, 0),
}
```

```python
from asmlib import *
from common import *


def cmul_sq(A, d, a, t):
    A(f"v_mul_f32 {v(t)}, {v(a+1)}, {v(a+1)}")
    A(f"v_mul_f32 {v(t+1)}, {v(a)}, {v(a+1)}")
    A(f"v_fma_f32 {v(d)}, {v(a)}, {v(a)}, -{v(t)}")
    A(f"v_add_f32 {v(d+1)}, {v(t+1)}, {v(t+1)}")


def horner(A, dr, di, L, pr, pi, er, ei, t):
    A(f"v_fma_f32 {v(t)}, {v(L)}, {v(pr)}, {v(er)}")
    A(f"v_fma_f32 {v(t+1)}, {v(L)}, {v(pi)}, {v(ei)}")
    A(f"v_fma_f32 {v(t)}, -{v(L+1)}, {v(pi)}, {v(t)}")
    A(f"v_fma_f32 {v(di)}, {v(L+1)}, {v(pr)}, {v(t+1)}")
    A(f"v_mov_b32 {v(dr)}, {v(t)}")


ROT = int(os.environ.get('ROT', '1'))
G1_NS = int(os.environ.get('G1_NS', '4'))


def gen_g1(A, name="g1_kernel", kidx=0):
    NS = G1_NS
    A(f".globl {name}\n.p2align 8\n.type {name},@function")
    A.label(name)
    A("s_cmp_ge_u32 s2, 256")
    A(f"s_cbranch_scc1 L_{name}_end")
    stamp_begin(A)
    A("s_load_dwordx2 s[4:5], s[0:1], 24")
    A("s_load_dwordx4 s[8:11], s[0:1], 32")
    A("s_load_dwordx4 s[12:15], s[0:1], 48")
    A("s_load_dwordx2 s[6:7], s[0:1], 80")
    A("s_load_dwordx4 s[16:19], s[0:1], 104")
    A("v_lshrrev_b32 v2, 6, v0")
    A("v_and_b32 v1, 63, v0")
    A("v_readfirstlane_b32 s20, v2")
    A("s_and_b32 s44, s2, 7\ns_lshr_b32 s45, s2, 3")
    A("s_lshr_b32 s21, s44, 1\ns_lshl_b32 s21, s21, 2\ns_lshr_b32 s46, s45, 3\ns_add_u32 s21, s21, s46")
    A("s_and_b32 s22, s44, 1\ns_lshl_b32 s22, s22, 3\ns_and_b32 s46, s45, 7\ns_add_u32 s22, s22, s46")
    A("s_waitcnt lgkmcnt(0)")
    A("s_cmp_ge_u32 s20, 4")
    A(f"s_cbranch_scc0 L_{name}_compute")
    A("s_sub_u32 s23, s20, 4")
    A("s_lshl_b32 s44, s21, 18\ns_add_u32 s24, s4, s44\ns_addc_u32 s25, s5, 0\ns_mov_b32 s26, 0x40000\ns_mov_b32 s27, 0x20000")
    A("s_bitcmp1_b32 s23, 0\ns_cselect_b32 s28, s14, s12\ns_cselect_b32 s29, s15, s13")
    A("s_lshl_b32 s44, s22, 17\ns_add_u32 s28, s28, s44\ns_addc_u32 s29, s29, 0\ns_mov_b32 s30, 0x20000\ns_mov_b32 s31, 0x20000")
    A("v_lshrrev_b32 v2, 5, v1")
    A("v_bfe_u32 v3, v1, 3, 2")
    A("v_and_b32 v4, 1, v3\nv_lshrrev_b32 v5, 1, v3")
    A("v_lshlrev_b32 v6, 5, v2\nv_lshl_add_u32 v6, v4, 4, v6\nv_add_u32 v6, v6, v5")
    A("s_lshr_b32 s44, s23, 1\ns_lshl_b32 s45, s44, 6\ns_and_b32 s46, s23, 1\ns_lshl_b32 s46, s46, 3\ns_add_u32 s45, s45, s46")
    A("v_add_u32 v6, s45, v6\nv_lshlrev_b32 v6, 11, v6")
    A("s_lshl_b32 s45, s44, 5")
    A("v_lshl_add_u32 v7, v2, 3, v3\nv_add_u32 v7, s45, v7\nv_lshlrev_b32 v7, 11, v7")
    A("v_and_b32 v4, 7, v1\nv_lshrrev_b32 v5, 4, v1\nv_xor_b32 v4, v4, v5\nv_lshlrev_b32 v4, 4, v4")
    A("v_xor_b32 v5, 64, v4")
    for u in range(4):
        ch = 4 if u % 2 == 0 else 5
        A(f"v_add_u32 v{8+u}, v6, v{ch}")
        if u:
            A(f"v_add_u32 v{8+u}, {u*4096 - u*1024}, v{8+u}")
        A(f"v_add_u32 v{12+u}, v7, v{ch}")
        if u:
            A(f"v_add_u32 v{12+u}, {(16*(u>>1) + 4*(u&1))*2048 - u*1024}, v{12+u}")
    A("s_lshl_b32 s47, s23, 12")
    A("s_and_b32 s49, s2, 7\ns_lshl_b32 s49, s49, 8")
    mark(A, 6)
    A("s_or_b32 s44, s2, s23\ns_cmp_lg_u32 s44, 0")
    A(f"s_cbranch_scc1 L_{name}_nononce")
    A(f"s_load_dword s50, s[18:19], {WS_NONCE}")
    A("v_mov_b32 v16, 0\ns_waitcnt lgkmcnt(0)")
    A("s_add_u32 s50, s50, 1\ns_cmp_eq_u32 s50, 0\ns_cselect_b32 s50, 1, s50")
    A("v_mov_b32 v17, s50")
    A("global_store_dword v16, v17, s[16:17] sc0 sc1")
    A(f"global_store_dword v16, v17, s[18:19] offset:{WS_NONCE}")
    A.label(f"L_{name}_nononce")

    def issue(k):
        slot = k % NS
        A(f"s_add_u32 m0, s47, {slot*32768}")
        if ROT:
            A(f"s_add_u32 s48, s49, {k*128}\ns_and_b32 s48, s48, 0x7ff")
        else:
            A(f"s_mov_b32 s48, {k*128}")
        for u in range(4):
            A(f"buffer_load_dwordx4 v{8+u}, s[24:27], s48 offen offset:{u*1024} lds")
        A(f"s_add_u32 m0, s47, {slot*32768 + 16384}")
        for u in range(4):
            A(f"buffer_load_dwordx4 v{12+u}, s[28:31], s48 offen offset:{u*1024} lds")
    for k in range(NS-1):
        issue(k)
    for k in range(16):
        last_issued = min(15, k + NS - 2)
        A(f"s_waitcnt vmcnt({8*(last_issued - k)})")
        A("s_barrier")
        if k % 4 == 0:
            mark(A, 1 + k//4)
        if k + NS - 1 < 16:
            issue(k + NS - 1)
    A("s_barrier")
    stamp_end(A, kidx, 20)
    A("s_endpgm")
    A.label(f"L_{name}_compute")
    ACC = lambda T, c: 64 + (T*2 + c)*16
    FR = lambda X, f: 32 + X*16 + f*4
    NSET = (NS + 1)//2
    AD = lambda st, op, ks: 128 + st*8 + op*4 + ks
    LAM, KC, L16, L128, L256 = 24, 26, 28, 30, 2
    A("s_lshr_b32 s23, s20, 1\ns_and_b32 s44, s20, 1")
    A("s_mov_b32 s51, s44")
    A("v_and_b32 v6, 31, v1\nv_lshrrev_b32 v5, 5, v1")
    A("v_and_b32 v4, 0x13, v6")
    A("v_bfe_u32 v7, v6, 2, 1\nv_lshl_or_b32 v4, v7, 3, v4")
    A("v_bfe_u32 v7, v6, 3, 1\nv_lshl_or_b32 v4, v7, 2, v4")
    A("s_lshl_b32 s45, s22, 6\ns_lshl_b32 s46, s44, 5\ns_add_u32 s45, s45, s46")
    A("v_add_u32 v4, s45, v4")
    A("v_lshlrev_b32 v7, 1, v4")
    A("global_load_ushort v8, v7, s[8:9]\nglobal_load_ushort v9, v7, s[10:11]\nglobal_load_ushort v10, v7, s[6:7]")
    table_base(A, 52, name)
    A("v_lshlrev_b32 v11, 4, v1")
    A(f"global_load_dwordx4 v[248:251], v11, s[52:53] offset:{TBL_PERM}")
    A(f"global_load_dwordx4 v[252:255], v11, s[52:53] offset:{TBL_PERM+1024}")
    A("v_bfe_u32 v7, v6, 1, 3\nv_xor_b32 v7, v7, v5\nv_lshlrev_b32 v7, 4, v7\nv_lshl_add_u32 v7, v6, 7, v7")
    A("s_lshl_b32 s45, s23, 13\ns_lshl_b32 s46, s44, 13\ns_add_u32 s46, s46, 16384")
    for ks in range(4):
        A(f"v_xor_b32 v12, {ks << 5}, v7")
        A(f"v_add_u32 v{AD(0,0,ks)}, s45, v12\nv_add_u32 v{AD(0,1,ks)}, s46, v12")
        for st in range(1, NSET):
            A(f"v_add_u32 v{AD(st,0,ks)}, {st*65536}, v{AD(0,0,ks)}")
            A(f"v_add_u32 v{AD(st,1,ks)}, {st*65536}, v{AD(0,1,ks)}")
    for r in range(64, 128, 2):
        A(f"v_mov_b64 v[{r}:{r+1}], 0")
    A(f"s_add_u32 s32, s18, {WS_EG}\ns_addc_u32 s33, s19, 0\ns_mov_b32 s34, 0x40000\ns_mov_b32 s35, 0x20000")
    A(f"s_add_u32 s36, s18, {WS_HT}\ns_addc_u32 s37, s19, 0\ns_mov_b32 s38, 0x800000\ns_mov_b32 s39, 0x20000")
    A("s_waitcnt vmcnt(2)")
    A("v_lshlrev_b32 v8, 16, v8\nv_lshlrev_b32 v9, 16, v9\nv_lshlrev_b32 v10, 16, v10")
    A("v_mul_f32 v10, 0x3fb8aa3b, v10\nv_exp_f32 v10, v10")
    A("v_cvt_pk_bf16_f32 v10, v10, v10\nv_lshlrev_b32 v10, 16, v10")
    A("v_mul_f32 v12, v10, v8\nv_mul_f32 v13, v10, v9")
    A("v_mul_f32 v12, 0x3fb8aa3b, v12\nv_exp_f32 v12, v12")
    A("v_mul_f32 v13, 0.15915494, v13\nv_rndne_f32 v14, v13\nv_sub_f32 v13, v13, v14")
    A("v_cos_f32 v14, v13\nv_sin_f32 v15, v13")
    A(f"v_mul_f32 v{LAM}, v12, v14\nv_mul_f32 v{LAM+1}, v12, v15")
    A(f"v_add_f32 v12, -1.0, v{LAM}")
    A("v_mul_f32 v13, v8, v8\nv_fma_f32 v13, v9, v9, v13\nv_rcp_f32 v13, v13")
    A("v_add_f32 v13, v13, v13")
    A(f"v_mul_f32 v14, v12, v8\nv_fma_f32 v14, v{LAM+1}, v9, v14\nv_mul_f32 v{KC}, v14, v13")
    A(f"v_mul_f32 v14, v{LAM+1}, v8\nv_fma_f32 v14, -v12, v9, v14\nv_mul_f32 v{KC+1}, v14, v13")
    cmul_sq(A, L16, LAM, 12)
    for _ in range(3):
        cmul_sq(A, L16, L16, 12)
    cmul_sq(A, L128, L16, 12)
    for _ in range(2):
        cmul_sq(A, L128, L128, 12)
    cmul_sq(A, L256, L128, 12)

    def reads(k, ks, which):
        slot = k % NS
        st, off = slot >> 1, (slot & 1)*32768
        X = ks & 1
        for f in which:
            op = 0 if f in (0, 3) else 1
            hi = 4096 if f in (2, 3) else 0
            A(f"ds_read_b128 {v(FR(X, f), 4)}, v{AD(st, op, ks)} offset:{off + hi}")

    def mfma(T, c, X):
        a = FR(X, 0 if T == 0 else 3)
        b = FR(X, 1 if c == 0 else 2)
        A(f"v_mfma_f32_32x32x16_bf16 {v(ACC(T,c),16)}, {v(a,4)}, {v(b,4)}, {v(ACC(T,c),16)}")
    A("s_barrier")
    reads(0, 0, [0, 1, 2, 3])
    for k in range(16):
        for ks in range(4):
            X = ks & 1
            nk, nks = (k, ks+1) if ks < 3 else (k+1, 0)
            have = nk < 16
            if ks == 3:
                A("s_waitcnt lgkmcnt(0)\ns_barrier")
            else:
                A("s_waitcnt lgkmcnt(2)")
            if k == 15 and ks == 0:
                A("v_mov_b32 v12, 0")
                A("global_load_dword v13, v12, s[16:17] sc1")
            mfma(0, 0, X)
            if have:
                reads(nk, nks, [0, 1])
            if ks != 3:
                A("s_waitcnt lgkmcnt(3)")
            mfma(0, 1, X)
            if have:
                reads(nk, nks, [2, 3])
            if ks != 3:
                A("s_waitcnt lgkmcnt(4)")
            mfma(1, 0, X)
            mfma(1, 1, X)
    mark(A, 1)
    U = lambda c, idx: ACC(idx >> 3, c) + 2*(idx & 7)
    bc_a = "op_sel_hi:[0,1,1]"
    bc_b = "op_sel:[1,0,0]"
    neg0 = "neg_lo:[1,0,0] neg_hi:[1,0,0]"
    E = 32
    TT = 40

    def scan_step(dr, di, pr, pi, ur, ui):
        A(f"v_pk_fma_f32 {v(TT,2)}, {v(LAM,2)}, {v(pr,2)}, {v(ur,2)} {bc_a}")
        A(f"v_pk_fma_f32 {v(TT+2,2)}, {v(LAM,2)}, {v(pi,2)}, {v(ui,2)} {bc_a}")
        A(f"v_pk_fma_f32 {v(dr,2)}, {v(LAM,2)}, {v(pi,2)}, {v(TT,2)} {bc_b} {neg0}")
        A(f"v_pk_fma_f32 {v(di,2)}, {v(LAM,2)}, {v(pr,2)}, {v(TT+2,2)} {bc_b}")
    cur = (U(0, 0), U(1, 0))
    for idx in range(1, 16):
        d = E + 4*(idx & 1 ^ 1)
        scan_step(d, d+2, cur[0], cur[1], U(0, idx), U(1, idx))
        cur = (d, d+2)
    assert cur[0] == E
    A("s_lshl_b32 s45, s51, 11\ns_lshl_b32 s46, s23, 5")
    A("v_lshl_add_u32 v14, v6, 6, s45")
    A("v_lshl_add_u32 v15, v5, 4, v14\nv_add_u32 v15, s46, v15")
    A(f"ds_write_b128 v15, {v(E,4)}")
    A("s_sub_u32 s45, s21, 1\ns_lshl_b32 s45, s45, 14")
    A("v_lshlrev_b32 v16, 4, v4\nv_lshlrev_b32 v17, 14, v5\nv_sub_u32 v17, v16, v17")
    A(f"v_add_u32 v128, s45, v17")
    for u in range(1, 8):
        A(f"v_subrev_u32 v{128+u}, {u*32768}, v128")
    A("s_lshl_b32 s45, s21, 14\nv_add_u32 v16, s45, v16")
    A("v_lshlrev_b32 v17, 30, v5\nv_or_b32 v16, v16, v17")
    A("s_waitcnt lgkmcnt(0)\ns_barrier")
    mark(A, 2)
    SG = 144
    for u in range(4):
        A(f"ds_read_b128 {v(SG+4*u,4)}, v14 offset:{u*16}")
    A.label(f"L_{name}_nonce")
    A("s_waitcnt vmcnt(0)")
    A("v_readfirstlane_b32 s50, v13")
    A("s_cmp_lg_u32 s50, 0")
    A(f"s_cbranch_scc1 L_{name}_gotnonce")
    A("global_load_dword v13, v12, s[16:17] sc1")
    A(f"s_branch L_{name}_nonce")
    A.label(f"L_{name}_gotnonce")
    A("s_waitcnt lgkmcnt(0)")
    seg = lambda sidx: (SG + 4*(sidx >> 1) + (sidx & 1), SG + 4*(sidx >> 1) + 2 + (sidx & 1))
    P = 44
    A(f"v_mov_b32 v{P}, v{seg(0)[0]}\nv_mov_b32 v{P+1}, v{seg(0)[1]}")
    for sidx in range(1, 8):
        horner(A, P, P+1, L16, P, P+1, seg(sidx)[0], seg(sidx)[1], TT)
    A(f"v_mov_b32 v{P+2}, s50\nv_mov_b32 v{P+3}, s50")
    A("s_cmp_lg_u32 s23, 0")
    A(f"s_cbranch_scc1 L_{name}_nopub")
    A(f"buffer_store_dwordx4 {v(P,4)}, v16, s[32:35], 0 offen sc0 sc1")
    A.label(f"L_{name}_nopub")
    mark(A, 3)
    LB = 160
    A("v_mov_b32 v17, 0x40000000")
    for u in range(8):
        A(f"v_cmp_le_i32 vcc, 0, v{128+u}")
        A(f"v_cndmask_b32 v{136+u}, 0, v{P+2}, vcc")
        A(f"v_cndmask_b32 v{128+u}, v17, v{128+u}, vcc")
    A("s_mov_b32 s46, 0")
    A.label(f"L_{name}_poll")
    for u in range(8):
        A(f"buffer_load_dwordx4 {v(LB+4*u,4)}, v{128+u}, s[32:35], 0 offen sc1")
    A("s_mov_b64 s[54:55], 0")
    for u in range(8):
        A(f"s_waitcnt vmcnt({7-u})")
        A(f"v_cmp_ne_u32 vcc, v{LB+4*u+2}, v{136+u}")
        A("s_or_b64 s[54:55], s[54:55], vcc")
        A(f"v_cmp_ne_u32 vcc, v{LB+4*u+3}, v{136+u}")
        A("s_or_b64 s[54:55], s[54:55], vcc")
    A("s_add_u32 s46, s46, 1")
    A("s_cmp_eq_u64 s[54:55], 0")
    A(f"s_cbranch_scc1 L_{name}_polled")
    A(f"s_cmp_lt_u32 s46, {SPIN_MAX}")
    A(f"s_cbranch_scc1 L_{name}_poll")
    A.label(f"L_{name}_polled")
    mark(A, 4)
    if STAMP:
        A("s_mov_b32 s86, s46\ns_add_u32 s86, s86, s70")
    H = LB + 28
    for u in range(6, -1, -1):
        horner(A, H, H+1, L256, H, H+1, LB+4*u, LB+4*u+1, TT)
    A(f"v_mov_b32 v48, v{H}\nv_mov_b32 v49, v{H+1}")
    A(f"v_permlane32_swap_b32 v{H}, v48\nv_permlane32_swap_b32 v{H+1}, v49")
    PS = 192
    horner(A, PS, PS+1, L128, 48, 49, H, H+1, TT)
    for sidx in range(1, 8):
        pr = PS + 2*(sidx-1)
        horner(A, pr+2, pr+3, L16, pr, pr+1, seg(sidx-1)[0], seg(sidx-1)[1], TT)
    A("s_cmp_eq_u32 s23, 0")
    A(f"s_cbranch_scc1 L_{name}_wt0")
    for r in range(8):
        A(f"v_mov_b32 v{PS+r}, v{PS+8+r}")
    A.label(f"L_{name}_wt0")
    A("v_cmp_eq_u32 vcc, 1, v5")
    G = 48
    A(f"v_cndmask_b32 v{G}, v{PS}, v{PS+4}, vcc")
    A(f"v_cndmask_b32 v{G+1}, v{PS+2}, v{PS+6}, vcc")
    A(f"v_cndmask_b32 v{G+2}, v{PS+1}, v{PS+5}, vcc")
    A(f"v_cndmask_b32 v{G+3}, v{PS+3}, v{PS+7}, vcc")
    PK = lambda c, idx: 128 + 16*c + idx
    cur = (G, G+2)
    O = 52
    for idx in range(16):
        d = (U(0, idx), U(1, idx))
        scan_step(d[0], d[1], cur[0], cur[1], d[0], d[1])
        cur = d
        A(f"v_pk_mul_f32 {v(O,2)}, {v(KC,2)}, {v(d[0],2)} op_sel_hi:[0,1]")
        A(f"v_pk_mul_f32 {v(O+2,2)}, {v(KC,2)}, {v(d[1],2)} op_sel_hi:[0,1] neg_lo:[1,0] neg_hi:[1,0]")
        A(f"v_pk_fma_f32 {v(O,2)}, {v(KC,2)}, {v(d[1],2)}, {v(O,2)} {bc_b} {neg0}")
        A(f"v_pk_fma_f32 {v(O+2,2)}, {v(KC,2)}, {v(d[0],2)}, {v(O+2,2)} {bc_b} {neg0}")
        A(f"v_cvt_pk_bf16_f32 v{PK(0,idx)}, v{O}, v{O+1}")
        A(f"v_cvt_pk_bf16_f32 v{PK(1,idx)}, v{O+2}, v{O+3}")
    mark(A, 5)
    D = lambda c, X: 160 + (c*2 + X)*16
    for c in range(2):
        for X in range(2):
            A(f"v_mfma_f32_32x32x16_bf16 {v(D(c,X),16)}, {v(PK(c,8*X),4)}, v[248:251], 0")
            A(f"v_mfma_f32_32x32x16_bf16 {v(D(c,X),16)}, {v(PK(c,8*X+4),4)}, v[252:255], {v(D(c,X),16)}")
    A("s_lshl_b32 s45, s21, 1\ns_add_u32 s45, s45, s23\ns_lshl_b32 s45, s45, 18")
    A("s_lshl_b32 s46, s22, 13\ns_add_u32 s45, s45, s46\ns_lshl_b32 s46, s51, 11\ns_add_u32 s45, s45, s46")
    for c in range(2):
        for X in range(2):
            A(f"s_add_u32 s46, s45, {X*131072 + c*4096}")
            q = 64 + (c*2 + X)*8
            for jj in range(8):
                A(f"v_cvt_pk_bf16_f32 v{q+jj}, v{D(c,X)+2*jj}, v{D(c,X)+2*jj+1}")
            A(f"buffer_store_dwordx4 {v(q,4)}, v11, s[36:39], s46 offen")
            A(f"buffer_store_dwordx4 {v(q+4,4)}, v11, s[36:39], s46 offen offset:1024")
    stamp_end(A, kidx, 20)
    A.label(f"L_{name}_end")
    A("s_endpgm")
    return kdesc(name, 256)


def gen_g2(A, name="g2_kernel", kidx=1):
    HD = 32
    CD = 10
    R = 16
    BG = 2
    A(f".globl {name}\n.p2align 8\n.type {name},@function")
    A.label(name)
    A("s_cmp_ge_u32 s2, 256")
    A(f"s_cbranch_scc1 L_{name}_end")
    stamp_begin(A)
    A("s_load_dwordx2 s[4:5], s[0:1], 24")
    A("s_load_dwordx4 s[8:11], s[0:1], 64")
    A("s_load_dwordx4 s[12:15], s[0:1], 88")
    A("s_load_dwordx2 s[18:19], s[0:1], 112")
    A("v_lshrrev_b32 v2, 6, v0")
    A("v_and_b32 v1, 63, v0")
    A("v_readfirstlane_b32 s20, v2")
    A("s_and_b32 s44, s2, 7\ns_lshr_b32 s45, s2, 3")
    A("s_lshr_b32 s21, s44, 1\ns_lshl_b32 s21, s21, 2\ns_lshr_b32 s46, s45, 3\ns_add_u32 s21, s21, s46")
    A("s_and_b32 s22, s44, 1\ns_lshl_b32 s22, s22, 3\ns_and_b32 s46, s45, 7\ns_add_u32 s22, s22, s46")
    A("v_lshlrev_b32 v2, 4, v1")
    A("v_lshrrev_b32 v3, 3, v1")
    A("s_and_b32 s44, s20, 1\ns_lshl_b32 s44, s44, 5\ns_lshr_b32 s45, s20, 1\ns_add_u32 s44, s44, s45")
    A("v_lshl_add_u32 v3, v3, 1, s44\nv_lshlrev_b32 v3, 11, v3")
    A("v_and_b32 v12, 7, v1\nv_lshrrev_b32 v13, 4, v1\nv_xor_b32 v12, v12, v13\nv_lshlrev_b32 v12, 4, v12")
    A("v_xor_b32 v13, 64, v12")
    A("v_add_u32 v14, v3, v12")
    A(f"v_add_u32 v15, v3, v13\nv_add_u32 v15, {16*2048 - 1024}, v15")
    A("s_waitcnt lgkmcnt(0)")
    A("s_lshl_b32 s44, s21, 2\ns_add_u32 s44, s44, s20\ns_lshl_b32 s44, s44, 17")
    A(f"s_add_u32 s44, s44, {WS_HT}")
    A("s_add_u32 s24, s18, s44\ns_addc_u32 s25, s19, 0\ns_mov_b32 s26, 0x20000\ns_mov_b32 s27, 0x20000")
    A("s_lshl_b32 s44, s22, 17")
    A("s_add_u32 s28, s8, s44\ns_addc_u32 s29, s9, 0\ns_mov_b32 s30, 0x20000\ns_mov_b32 s31, 0x20000")
    A("s_add_u32 s32, s10, s44\ns_addc_u32 s33, s11, 0\ns_mov_b32 s34, 0x20000\ns_mov_b32 s35, 0x20000")
    A("s_lshl_b32 s47, s20, 11")
    A("s_and_b32 s57, s2, 7\ns_lshl_b32 s56, s57, 14\ns_lshl_b32 s57, s57, 8")
    mark(A, 7)
    vm = VmCounter(A)
    HR = lambda s_: 64 + 4*(s_ % HD)

    def hload(s_):
        if s_ % 4 == 0:
            if ROT:
                A(f"s_add_u32 s48, s56, {(s_ >> 2)*4096}\ns_and_b32 s48, s48, 0x1ffff")
            else:
                A(f"s_mov_b32 s48, {(s_ >> 2)*4096}")
        vm.op(f"buffer_load_dwordx4 {v(HR(s_),4)}, v2, s[24:27], s48 offen offset:{(s_ & 3)*1024}", ("h", s_))

    def cdma(g, u):
        srd = "s[28:31]" if g % 2 == 0 else "s[32:35]"
        if u == 0:
            A(f"s_add_u32 m0, s47, {(g % R)*8192}")
            if ROT:
                A(f"s_add_u32 s49, s57, {(g >> 1)*128}\ns_and_b32 s49, s49, 0x7ff")
            else:
                A(f"s_mov_b32 s49, {(g >> 1)*128}")
        vm.op(f"buffer_load_dwordx4 v{14+u}, {srd}, s49 offen offset:{u*1024} lds", ("c", g))
    for g in range(CD):
        cdma(g, 0)
        cdma(g, 1)
        if g < HD//4:
            for ks in range(4):
                hload(4*g + ks)
    A("v_and_b32 v16, 31, v1\nv_lshrrev_b32 v17, 5, v1")
    A("v_bfe_u32 v18, v16, 1, 3\nv_xor_b32 v18, v18, v17\nv_lshlrev_b32 v18, 4, v18\nv_lshl_add_u32 v18, v16, 7, v18")
    for ks in range(4):
        A(f"v_xor_b32 v{4+ks}, {ks << 5}, v18")
        A(f"v_add_u32 v{8+ks}, 0x10000, v{4+ks}")
    A("s_and_b32 s44, s20, 1\ns_lshl_b32 s44, s44, 3")
    A("v_lshl_add_u32 v17, v17, 2, s44")
    A("v_lshlrev_b32 v208, 11, v17\nv_lshl_add_u32 v208, v16, 2, v208")
    A("v_lshlrev_b32 v209, 13, v17\nv_lshl_add_u32 v209, v16, 3, v209")
    A("v_lshlrev_b32 v210, 2, v16")
    A("s_lshl_b32 s44, s21, 1\ns_lshr_b32 s45, s20, 1\ns_add_u32 s44, s44, s45")
    A("s_lshl_b32 s45, s44, 17\ns_lshl_b32 s46, s22, 7\ns_add_u32 s45, s45, s46")
    A("s_add_u32 s36, s4, s45\ns_addc_u32 s37, s5, 0\ns_sub_u32 s38, 0x20000, s46\ns_mov_b32 s39, 0x20000")
    A("s_add_u32 s12, s12, s46\ns_addc_u32 s13, s13, 0")
    A("s_lshl_b32 s45, s44, 19\ns_lshl_b32 s46, s22, 8\ns_add_u32 s46, s46, 4096\ns_add_u32 s45, s45, s46")
    A("s_add_u32 s40, s14, s45\ns_addc_u32 s41, s15, 0\ns_sub_u32 s42, 0x80000, s46\ns_mov_b32 s43, 0x20000")
    ACC = lambda nt: 16 + 16*nt
    CF = lambda X, nt: 48 + 8*X + 4*nt

    def reads(s_):
        g, ks = s_ >> 2, s_ & 3
        slot = g % R
        base = 4 if slot < 8 else 8
        for nt in range(2):
            A(f"ds_read_b128 {v(CF(s_ & 1, nt),4)}, v{base+ks} offset:{(slot & 7)*8192 + nt*4096}")
    mark(A, 1)
    vm.wait_for(("c", BG-1))
    A("s_barrier")
    mark(A, 2)
    reads(0)
    for s_ in range(128):
        g, ks = s_ >> 2, s_ & 3
        nxt = s_ + 1
        newgrp = nxt < 128 and nxt % (4*BG) == 0
        wh = vm.wait_for(("h", s_), emit=False)
        if newgrp:
            wc = vm.wait_for(("c", (nxt >> 2) + BG - 1), emit=False)
            A(f"s_waitcnt vmcnt({min(wh, wc)}) lgkmcnt(0)\ns_barrier")
            if nxt % 32 == 0:
                mark(A, 2 + nxt//32)
            reads(nxt)
        else:
            if nxt < 128:
                reads(nxt)
                A(f"s_waitcnt vmcnt({wh}) lgkmcnt(2)")
            else:
                A(f"s_waitcnt vmcnt({wh}) lgkmcnt(0)")
        for nt in range(2):
            c = "0" if s_ == 0 else v(ACC(nt), 16)
            A(f"v_mfma_f32_32x32x16_bf16 {v(ACC(nt),16)}, {v(HR(s_),4)}, {v(CF(s_ & 1, nt),4)}, {c}")
        if s_ + HD < 128:
            hload(s_ + HD)
        if ks in (0, 2) and g + CD < 32:
            cdma(g + CD, ks >> 1)
        if s_ == 128 - HD:
            vm.op("global_load_dword v211, v210, s[12:13]", "dsk")
        if 128 - HD <= s_ < 128 - HD + 16:
            e = s_ - (128 - HD)
            q, r = e >> 2, e & 3
            A(f"s_mov_b32 s50, {q*32768 + (r >> 1)*4096}")
            vm.op(f"buffer_load_dword v{192+e}, v208, s[36:39], s50 offen offset:{(r & 1)*2048}", ("x", e))
    mark(A, 6)
    A("s_waitcnt vmcnt(0)")
    A("v_lshlrev_b32 v212, 16, v211\nv_and_b32 v213, 0xffff0000, v211")
    for e in range(16):
        q, r = e >> 2, e & 3
        t = 64 + 4*e
        A(f"v_lshlrev_b32 v{t}, 16, v{192+e}\nv_and_b32 v{t+1}, 0xffff0000, v{192+e}")
        A(f"v_pk_mul_f32 {v(t,2)}, {v(t,2)}, v[212:213]")
        A(f"v_cvt_pk_bf16_f32 v{t+2}, v{t}, v{t+1}")
        A(f"v_lshlrev_b32 v{t}, 16, v{t+2}\nv_and_b32 v{t+1}, 0xffff0000, v{t+2}")
        A(f"v_add_f32 v{t}, v{t}, v{ACC(0)+e}\nv_add_f32 v{t+1}, v{t+1}, v{ACC(1)+e}")
        A(f"s_mov_b32 s50, {(16*q + r)*8192}")
        A(f"buffer_store_dwordx2 {v(t,2)}, v209, s[40:43], s50 offen")
    stamp_end(A, kidx, 20)
    A.label(f"L_{name}_end")
    A("s_endpgm")
    return kdesc(name, 256)
```

```python
import sys
from asmlib import *
from common import *
import partb

HEADER = open("concat_heads__spectral_gfnet__ssm_conv_s5__prompt.s.ref").read().split("; Override launch")[0]

def build(parts):
    launches, bodies, descs = [], [], []
    for kidx, (name, gen, grid, block, lds) in enumerate(parts):
        A = Asm()
        d = gen(A, name, kidx)
        lines, npad = pad(A.lines)
        print(f"; {name}: {len(lines)} lines, {npad} pad states", file=sys.stderr)
        launches.append(f"; @launch kernel={name} grid=({grid},1,1) block=({block},1,1) lds={lds}")
        bodies.append("\n".join(lines)); descs.append(d)
    out = HEADER + "\n".join(launches) + '\n.amdgcn_target "amdgcn-amd-amdhsa--gfx950"\n.text\n'
    out += "\n".join(bodies) + "\n" + tables() + "\n" + "\n".join(descs) + "\n"
    return out

if __name__ == "__main__":
    which = sys.argv[1]
    P = {
        "g1": ("g1_kernel", partb.gen_g1, 256, 512, partb.G1_NS*32768),
        "g2": ("g2_kernel", partb.gen_g2, 256, 256, 131072),
    }
    try:
        import parta
        P.update(parta.PARTS)
    except ImportError:
        pass
    open(sys.argv[2], "w").write(build([P[k] for k in which.split(",")]))
```

```python
import sys
from asmlib import *
from common import *
import partb

HEADER = open("concat_heads__spectral_gfnet__ssm_conv_s5__prompt.s.ref").read().split("; Override launch")[0]

def build(parts):
    launches, bodies, descs = [], [], []
    for kidx, (name, gen, grid, block, lds) in enumerate(parts):
        A = Asm()
        d = gen(A, name, kidx)
        lines, npad = pad(A.lines)
        print(f"; {name}: {len(lines)} lines, {npad} pad states", file=sys.stderr)
        launches.append(f"; @launch kernel={name} grid=({grid},1,1) block=({block},1,1) lds={lds}")
        bodies.append("\n".join(lines)); descs.append(d)
    out = HEADER + "\n".join(launches) + '\n.amdgcn_target "amdgcn-amd-amdhsa--gfx950"\n.text\n'
    out += "\n".join(bodies) + "\n" + tables() + "\n" + "\n".join(descs) + "\n"
    return out

if __name__ == "__main__":
    which = sys.argv[1]
    P = {
        "g1": ("g1_kernel", partb.gen_g1, 256, 512, partb.G1_NS*32768),
        "g2": ("g2_kernel", partb.gen_g2, 256, 256, 131072),
    }
    def gen_empty(A, name, kidx):
        A(f".globl {name}\n.p2align 8\n.type {name},@function")
        A.label(name)
        A("s_endpgm")
        return kdesc(name, 256)
    for i in range(8):
        P[f"e{i}"] = (f"e{i}_kernel", gen_empty, 256, 64, 0)
    try:
        import parta
        P.update(parta.PARTS)
    except ImportError:
        pass
    open(sys.argv[2], "w").write(build([P[k] for k in which.split(",")]))
```

```python
import os, struct, math
import numpy as np
STAMP = int(os.environ.get("STAMP", "0"))
WS_NONCE = 0
WS_EG = 0x10000
WS_HT = 0x100000
WS_Z1 = 0x1000000
WS_Z3 = 0x1400000
WS_WT = 0x1800000
WS_XB = 0x2000000
WS_STAMP = 0x2800000
SPIN_MAX = 200000
TBL_PERM = 0
TBL_F = 2048
TBL_T = TBL_F + 8192
TBL_TT = TBL_T + 8192
TBL_END = TBL_TT + 8192

NMARK = 10
def stamp_begin(A):
    if STAMP:
        A("s_memrealtime s[96:97]")
        A("s_memtime s[70:71]")
        for i in range(1, NMARK):
            A(f"s_mov_b64 s[{70+2*i}:{71+2*i}], 0")

def mark(A, i, wait=True):
    if STAMP == 3:
        if i == int(os.environ.get("DIAGM", "0")):
            A(f"s_memrealtime s[72:73]\ns_waitcnt lgkmcnt(0)")
    elif STAMP:
        A(f"s_memtime s[{70+2*i}:{71+2*i}]")
        if wait:
            A("s_waitcnt lgkmcnt(0)")

def stamp_end(A, kidx, swave):
    if STAMP == 3:
        import random
        lab = f"L_se{random.randrange(1 << 30)}"
        m, k = int(os.environ.get("DIAGM", "0")), int(os.environ.get("DIAGK", "6000"))
        if m == 9:
            A("s_waitcnt vmcnt(0)\ns_memrealtime s[72:73]")
        A(f"s_waitcnt lgkmcnt(0)\ns_lshl_b32 s93, s2, 3\ns_add_u32 s93, s93, s{swave}\ns_cmp_lg_u32 s93, {int(os.environ.get('DBGW', '800'))}\ns_cbranch_scc1 {lab}")
        if m:
            A(f"s_sub_u32 s93, s72, s96\ns_mul_i32 s93, s93, {k}\ns_min_u32 s93, s93, 100000")
        else:
            A(f"s_mov_b32 s93, {k}")
        A.label(lab + "x")
        A(f"s_memrealtime s[98:99]\ns_waitcnt lgkmcnt(0)\ns_sub_u32 s98, s98, s96\ns_cmp_lt_u32 s98, s93\ns_cbranch_scc1 {lab}x")
        A.label(lab)
    elif STAMP == 2:
        import random
        lab = f"L_se{random.randrange(1 << 30)}"
        A("s_waitcnt vmcnt(0) lgkmcnt(0)")
        A("s_memrealtime s[98:99]")
        A(f"s_memtime s[{70+2*(NMARK-1)}:{71+2*(NMARK-1)}]")
        A("s_load_dwordx2 s[94:95], s[0:1], 104")
        A("s_waitcnt lgkmcnt(0)")
        A("s_not_b32 s93, s96\nv_mov_b32 v0, s98\nv_mov_b32 v1, s93\nv_mov_b32 v16, 0\ns_mov_b64 exec, 1")
        A("global_atomic_umax v16, v0, s[94:95] offset:4 sc1\nglobal_atomic_umax v16, v1, s[94:95] offset:8 sc1")
        A(f"s_lshl_b32 s93, s2, 3\ns_add_u32 s93, s93, s{swave}\ns_cmp_lg_u32 s93, {int(os.environ.get('DBGW', '800'))}\ns_cbranch_scc1 {lab}")
        for i in range(1, NMARK):
            A(f"s_sub_u32 s93, s{70+2*i}, s70\nv_mov_b32 v0, s93\nglobal_store_dword v16, v0, s[94:95] offset:{8+4*i} sc1")
        A(f"s_sub_u32 s93, s98, s96\nv_mov_b32 v0, s93\nglobal_store_dword v16, v0, s[94:95] offset:{8+4*NMARK} sc1")
        A.label(lab)
        A("s_mov_b64 exec, -1")
    elif STAMP:
        A("s_waitcnt vmcnt(0) lgkmcnt(0)")
        A("s_memrealtime s[98:99]")
        A(f"s_memtime s[{70+2*(NMARK-1)}:{71+2*(NMARK-1)}]")
        A("s_load_dwordx2 s[94:95], s[0:1], 112")
        A(f"s_lshl_b32 s93, s2, 4\ns_add_u32 s93, s93, s{swave}\ns_lshl_b32 s93, s93, 6\ns_add_u32 s93, s93, {WS_STAMP + kidx*0x100000}")
        A("s_waitcnt lgkmcnt(0)")
        A("v_mov_b32 v0, s96\nv_mov_b32 v1, s97\nv_mov_b32 v2, s98\nv_mov_b32 v3, s99\nv_mov_b32 v16, s93")
        for i in range(NMARK):
            A(f"v_mov_b32 v{4+i}, s{70+2*i}")
        for q in range(4):
            A(f"global_store_dwordx4 v16, v[{4*q}:{4*q+3}], s[94:95] offset:{16*q}")

_pc = [0]
def table_base(A, sreg, name):
    _pc[0] += 1
    lab = f"L_pc{_pc[0]}"
    A(f"s_getpc_b64 s[{sreg}:{sreg+1}]")
    A.label(lab)
    A(f"s_add_u32 s{sreg}, s{sreg}, tables-{lab}")
    A(f"s_addc_u32 s{sreg+1}, s{sreg+1}, 0")

def bf16_bits(x):
    u = struct.unpack("<I", struct.pack("<f", x))[0]
    return ((u + 0x7FFF + ((u >> 16) & 1)) >> 16) & 0xFFFF
def f32_bits(x):
    return struct.unpack("<I", struct.pack("<f", x))[0]

def tables():
    w = np.zeros(TBL_END//4, dtype=np.uint32)
    def put(off, chunk, lane, j, val):
        w[(off + chunk*1024 + lane*16)//4 + j] = val
    for l in range(64):
        n, h = l & 31, l >> 5
        for u in range(2):
            for jj in range(4):
                val = 0
                if n == 16*h + 4*u + jj: val = 0x3F80
                if n == 16*h + 8 + 4*u + jj: val = 0x3F800000
                put(TBL_PERM, u, l, jj, val)
        for s_ in range(4):
            for q in range(4):
                m = 8*s_ + 4*h + q
                th = 2*math.pi*((n*m) % 32)/32
                c, sn = math.cos(th), math.sin(th)
                if abs(c) < 1e-12: c = 0.0
                if abs(sn) < 1e-12: sn = 0.0
                put(TBL_F, s_, l, q, bf16_bits(c) | bf16_bits(sn) << 16)
                put(TBL_F, 4+s_, l, q, bf16_bits(-sn) | bf16_bits(c) << 16)
                th = 2*math.pi*(n*m)/1024
                put(TBL_T, s_, l, q, f32_bits(math.cos(th)))
                put(TBL_T, 4+s_, l, q, f32_bits(-math.sin(th)))
                th = 2*math.pi*(n + 32*m)/2048
                put(TBL_TT, s_, l, q, f32_bits(math.cos(th)))
                put(TBL_TT, 4+s_, l, q, f32_bits(-math.sin(th)))
    L = [".p2align 8", ".type tables,@object", "tables:"]
    for i in range(0, len(w), 8):
        L.append(".long " + ",".join(hex(int(x)) for x in w[i:i+8]))
    L.append(f".size tables, {TBL_END}")
    return "\n".join(L)
```

```python
import os
from asmlib import *
from common import *

E_ = lambda k, d: int(os.environ.get(k, str(d)))
XO, NP, RI, RJ = E_("XO", 3), E_("NP", 2), E_("RI", 0), E_("RJ", 0)
XO2, NP2 = E_("XO2", 2), E_("NP2", 1)
PRO = E_("PRO", 2)
HD = E_("HD", 12)
CD = E_("CD", 4)
NOAUX = E_("NOAUX", 0)
CODEPF = E_("CODEPF", 1)
NS = 3
R = 7
LA = E_('LA', 2)
FORCE_REMOTE = E_('FORCE_REMOTE', 0)
MF = "v_mfma_f32_32x32x16_bf16"
N0 = "neg_lo:[1,0,0] neg_hi:[1,0,0]"

AX, WR, WI, BX, LRE, LIM, BRE, BIM, CRE, CIM, LDT, DSK, OUT, DBG, WS = 4, 6, 8, 10, 12, 14, 16, 18, 20, 22, 24, 26, 28, 30, 32
WAVE, TI, TJ, NONCE, TBL = 34, 35, 36, 37, 38
S0, S1, S2, S3, S4 = 40, 44, 48, 52, 56
T0, T1, T2, T3, T4, T5, T6, T7, T8, T9 = range(60, 70)
MSK, CNT, LOCAL, PG = 90, 92, 100, 101
L_XCH = 122880
L_SYNC = 126976
L_AX = 131072
L_W = 147456
WS_CNT = 0x1000
CNT_A, CNT_B = WS_CNT, WS_CNT + 16*128
FLG_A, FLG_B = 0x84000, 0x86000
FLG_X = 0x8000
FLG_H = 0x60000
CPRO1 = E_("CPRO1", 2)
CPRO2 = E_("CPRO2", 2)
CTOUCH = E_("CTOUCH", 1)
FTOUCH = E_("FTOUCH", 1)
LBAT = E_("LBAT", 16)
XBF = E_("XBF", 1)
SLP_H, SLP_A = E_("SLP_H", 4), E_("SLP_A", 2)
NT = " nt" if E_("NT", 1) else ""
NTX = " nt"
NTK = E_("NTK", 0)
NTC = " nt" if E_("NTC", 0) else ""


def sp(a):
    return f"s[{a}:{a+1}]"


def srd(A, d, base, soff=None, const=0, size=None, size_s=None):
    if soff is None and const == 0:
        A(f"s_mov_b32 s{d}, s{base}\ns_mov_b32 s{d+1}, s{base+1}")
    else:
        if soff is not None and const:
            A(f"s_add_u32 s{d+2}, s{soff}, {const}")
            o = f"s{d+2}"
        elif soff is not None:
            o = f"s{soff}"
        else:
            o = str(const)
        A(f"s_add_u32 s{d}, s{base}, {o}\ns_addc_u32 s{d+1}, s{base+1}, 0")
    if size_s is not None:
        A(f"s_sub_u32 s{d+2}, {size}, s{size_s}")
    else:
        A(f"s_mov_b32 s{d+2}, {size}")
    A(f"s_mov_b32 s{d+3}, 0x20000")


def r4(d):
    return f"s[{d}:{d+3}]"


_u = [0]


def uid(p):
    _u[0] += 1
    return f"L_{p}{_u[0]}"


def get_nonce(A, vt):
    l, d = uid("n"), uid("nd")
    A(f"v_mov_b32 v{vt}, 0")
    A.label(l)
    A(f"global_load_dword v{vt+1}, v{vt}, {sp(DBG)} sc1")
    A("s_waitcnt vmcnt(0)")
    A(f"v_readfirstlane_b32 s{NONCE}, v{vt+1}")
    A(f"s_cmp_eq_u32 s{NONCE}, 0")
    A(f"s_cbranch_scc1 {l}")


def signal(A, sshard, cnt, flg, expect, vt):
    d = uid("sg")
    A(f"s_lshl_b32 s{CNT}, s{sshard}, 7\ns_add_u32 s{CNT}, s{CNT}, {cnt}")
    A(f"v_mov_b32 v{vt}, s{CNT}\nv_mov_b32 v{vt+1}, 1")
    A("s_waitcnt vmcnt(0)")
    A("s_mov_b64 exec, 1")
    A(f"global_atomic_add v{vt+2}, v{vt}, v{vt+1}, {sp(WS)} sc0 sc1")
    A(f"v_add_u32 v{vt}, {flg - cnt}, v{vt}\nv_mov_b32 v{vt+1}, s{NONCE}")
    A("s_waitcnt vmcnt(0)")
    A(f"v_readfirstlane_b32 s{CNT}, v{vt+2}")
    A(f"s_add_u32 s{CNT}, s{CNT}, 1\ns_cmp_lg_u32 s{CNT}, {expect}")
    A(f"s_cbranch_scc1 {d}")
    A(f"global_store_dword v{vt}, v{vt+1}, {sp(WS)} sc1")
    A.label(d)
    A("s_mov_b64 exec, -1")


def set_flag(A, soff, vt):
    A(f"v_mov_b32 v{vt}, s{soff}\nv_mov_b32 v{vt+1}, s{NONCE}")
    A("s_waitcnt vmcnt(0)")
    A("s_mov_b64 exec, 1")
    A(f"global_store_dword v{vt}, v{vt+1}, {sp(WS)} sc1")
    A("s_mov_b64 exec, -1")


def wait_cnt(A, vaddr, vt, sleep):
    l, d = uid("w"), uid("wd")
    A(f"s_mov_b32 s{CNT}, 0")
    A.label(l)
    A(f"global_load_dword v{vt}, v{vaddr}, {sp(WS)} sc1")
    A("s_waitcnt vmcnt(0)")
    A(f"v_cmp_ne_u32 vcc, s{NONCE}, v{vt}")
    A(f"s_cbranch_vccz {d}")
    if sleep:
        A(f"s_sleep {sleep}")
    A(f"s_add_u32 s{CNT}, s{CNT}, 1\ns_cmp_lt_u32 s{CNT}, {SPIN_MAX}")
    A(f"s_cbranch_scc1 {l}")
    A.label(d)


F, T = 192, 224


import struct as _st


def fl(x):
    return hex(_st.unpack("<I", _st.pack("<f", x))[0])


def lane_float(A, vn, vh, t):
    A(f"v_and_b32 v{t}, 31, v1\nv_cvt_f32_u32 v{t}, v{t}\nv_lshrrev_b32 v{t+1}, 5, v1\nv_lshlrev_b32 v{t+1}, 2, v{t+1}\nv_cvt_f32_u32 v{t+1}, v{t+1}")


def make_F(A, t):
    lane_float(A, None, None, t)
    A(f"v_mul_f32 v{t+1}, v{t}, v{t+1}\nv_mul_f32 v{t+1}, {fl(1/32)}, v{t+1}")
    for i in range(16):
        c = 8*(i >> 2) + (i & 3)
        a = t + 2 + 3*(i & 1)
        A(f"v_fmamk_f32 v{a}, v{t}, {fl(c/32)}, v{t+1}\nv_fract_f32 v{a}, v{a}")
        A(f"v_cos_f32 v{a+1}, v{a}\nv_sin_f32 v{a+2}, v{a}")
        A(f"v_cvt_pk_bf16_f32 v{F+i}, v{a+1}, v{a+2}\nv_cvt_pk_bf16_f32 v{F+16+i}, -v{a+2}, v{a+1}")


def make_T(A, dst, t, half):
    lane_float(A, None, None, t)
    if not half:
        A(f"v_mul_f32 v{t+1}, v{t}, v{t+1}\nv_mul_f32 v{t+1}, {fl(1/1024)}, v{t+1}")
    else:
        A(f"v_mul_f32 v{t}, {fl(1/2048)}, v{t}\nv_fmamk_f32 v{t+1}, v{t+1}, {fl(1/64)}, v{t}")
    for i in range(16):
        c = 8*(i >> 2) + (i & 3)
        a = t + 2 + (i & 1)
        if not half:
            A(f"v_fmamk_f32 v{a}, v{t}, {fl(c/1024)}, v{t+1}")
        else:
            A(f"v_add_f32 v{a}, {fl(c/64)}, v{t+1}")
        A(f"v_cos_f32 v{dst+i}, v{a}\nv_sin_f32 v{dst+16+i}, -v{a}")


def stage1(A, src, D, stride=4):
    for c in range(2):
        for s_ in range(4):
            cc = "0" if s_ == 0 else v(D+16*c, 16)
            A(f"{MF} {v(D+16*c,16)}, {v(src+stride*s_,4)}, {v(F+16*c+4*s_,4)}, {cc}")


def twiddle(A, D, dst, tmp):
    for i in range(16):
        re, im, tr, ti = D+i, D+16+i, T+i, T+16+i
        t = tmp + 2*(i & 3)
        A(f"v_mul_f32 v{t}, v{re}, v{tr}\nv_mul_f32 v{t+1}, v{re}, v{ti}")
        A(f"v_fma_f32 v{t}, -v{im}, v{ti}, v{t}\nv_fmac_f32 v{t+1}, v{im}, v{tr}")
        A(f"v_cvt_pk_bf16_f32 v{dst+i}, v{t}, v{t+1}")


def stage2(A, src, D):
    for c in range(2):
        for s_ in range(4):
            cc = "0" if s_ == 0 else v(D+16*c, 16)
            A(f"{MF} {v(D+16*c,16)}, {v(F+16*c+4*s_,4)}, {v(src+4*s_,4)}, {cc}")


W_ = T6
NBW = 2048*513*2
SQ, SO, ST = 184, 185, 186
VA1, VA2, VA8, VLIN = 4, 5, 6, 7
_ph = [0]


def l_arrive(A):
    _ph[0] += 1
    A(f"v_mov_b32 v{ST+4}, {_ph[0]}")
    A(f"s_mov_b64 exec, 1\nds_write_b32 v{SO}, v{ST+4}\ns_mov_b64 exec, -1")
    return _ph[0]


def l_check(A, n):
    l, d = uid("lc"), uid("lcd")
    A.label(l)
    A(f"ds_read_b128 {v(ST,4)}, v{SQ}\ns_waitcnt lgkmcnt(0)")
    A(f"v_min3_u32 v{ST}, v{ST}, v{ST+1}, v{ST+2}\nv_min_u32 v{ST}, v{ST}, v{ST+3}")
    A(f"v_readfirstlane_b32 s{CNT}, v{ST}")
    A(f"s_cmp_ge_u32 s{CNT}, {n}")
    A(f"s_cbranch_scc1 {d}")
    A(f"s_sleep 1\ns_branch {l}")
    A.label(d)


def l_sync(A):
    l_check(A, l_arrive(A))


def aux_setup(A):
    srd(A, S2, WR, size=NBW)
    srd(A, S3, WI, size=NBW)
    A(f"s_and_b32 s{T0}, s2, 31\ns_lshr_b32 s{T1}, s2, 5\ns_lshl_b32 s{T1}, s{T1}, 7\ns_add_u32 s{T0}, s{T0}, s{T1}")
    A(f"s_lshl_b32 s{T1}, s{W_}, 5\ns_add_u32 s{T7}, s{T0}, s{T1}\ns_lshl_b32 s{T0}, s{T7}, 12")
    srd(A, AX, AX, T0, 0, 0x1000)
    A("v_lshlrev_b32 v2, 4, v1\nv_xor_b32 v3, 128, v2")
    A(f"s_lshl_b32 s{T8}, s{W_}, 12\ns_add_u32 s{T8}, s{T8}, {L_AX}")
    A(f"s_and_b32 s{T0}, s2, 7\ns_bfe_u32 s{T1}, s2, 0x10003\ns_bfe_u32 s{T2}, s2, 0x20004\ns_lshr_b32 s{T3}, s2, 6")
    A(f"s_lshr_b32 s{T4}, s{T0}, 1\ns_lshl_b32 s{T4}, s{T4}, 3\ns_lshl_b32 s{T5}, s{T1}, 2\ns_add_u32 s{T4}, s{T4}, s{T5}")
    A(f"s_and_b32 s{T5}, s{T0}, 1\ns_lshl_b32 s{T5}, s{T5}, 1\ns_add_u32 s{T4}, s{T4}, s{T5}\ns_lshl_b32 s{T4}, s{T4}, 5")
    A(f"s_lshl_b32 s{T5}, s{T2}, 3\ns_add_u32 s{T4}, s{T4}, s{T5}\ns_lshl_b32 s{T5}, s{W_}, 1\ns_add_u32 s{T4}, s{T4}, s{T5}\ns_mul_i32 s{T4}, s{T4}, 1026")
    A(f"s_lshl_b32 s{T5}, s{T3}, 8\ns_add_u32 s{T9}, s{T4}, s{T5}")
    A("v_bfe_u32 v8, v1, 4, 1\nv_mul_u32_u24 v8, 32832, v8")
    A(f"v_lshrrev_b32 v9, 5, v1\ns_mov_b32 s{T5}, 1050624\nv_mul_lo_u32 v9, s{T5}, v9\nv_add_u32 v8, v8, v9")
    A(f"v_and_b32 v9, 15, v1\ns_lshl_b32 s{T5}, s{W_}, 1\nv_xor_b32 v9, s{T5}, v9")
    A("v_lshl_add_u32 v18, v9, 4, v8\nv_xor_b32 v9, 1, v9\nv_lshl_add_u32 v19, v9, 4, v8\nv_add_u32 v19, 1026, v19")
    A(f"s_bfe_u32 s{T4}, s2, 0x20005\ns_lshl_b32 s{T4}, s{T4}, 8\ns_bfe_u32 s{T5}, s2, 0x10004\ns_lshl_b32 s{T5}, s{T5}, 6\ns_add_u32 s{T4}, s{T4}, s{T5}")
    A(f"s_bfe_u32 s{T5}, s2, 0x10003\ns_lshl_b32 s{T5}, s{T5}, 7\ns_add_u32 s{T4}, s{T4}, s{T5}\ns_and_b32 s{T5}, s2, 7\ns_lshl_b32 s{T5}, s{T5}, 2\ns_add_u32 s{T4}, s{T4}, s{T5}")
    A(f"v_bfe_u32 v8, v1, 3, 2\nv_add_u32 v8, s{T4}, v8\nv_bfe_u32 v9, v1, 2, 1\nv_lshl_add_u32 v8, v9, 5, v8\nv_bfe_u32 v9, v1, 1, 1\nv_lshl_add_u32 v8, v9, 10, v8")
    A("v_sub_u32 v9, 2048, v8\nv_and_b32 v9, 2047, v9\nv_and_b32 v10, 1, v1\nv_cmp_eq_u32 vcc, 1, v10\nv_cndmask_b32 v8, v8, v9, vcc")
    A(f"v_mul_u32_u24 v17, 1026, v8\ns_lshr_b32 s{T4}, s2, 7\ns_lshl_b32 s{T4}, s{T4}, 10\nv_add_u32 v17, s{T4}, v17")


def aux_issue(A, vm):
    for c in range(2):
        A(f"s_add_u32 m0, s{T8}, {c*2048}")
        A(f"s_mov_b32 s{CNT}, {c*2048}")
        for u in range(2):
            vm.op(f"buffer_load_dwordx4 v{2+c}, {r4(AX)}, s{CNT} offen offset:{u*1024}{NT} lds", "aux")
    for bb in range(2):
        for arr in range(2):
            A(f"s_add_u32 m0, s{T8}, {L_W - L_AX + bb*2048 + arr*1024}")
            vm.op(f"buffer_load_dwordx4 v{18+bb}, {r4(S2 if arr == 0 else S3)}, s{T9} offen{NT} lds", "aux")
    nw = uid("nw")
    A(f"s_cmp_lg_u32 s{W_}, 3\ns_cbranch_scc1 {nw}")
    A("s_mov_b32 exec_hi, 0")
    A(f"buffer_load_ushort v{WSP}, v17, {r4(S2)}, 0 offen{NT}")
    A(f"buffer_load_ushort v{WSP+1}, v17, {r4(S3)}, 0 offen{NT}")
    A("s_mov_b64 exec, -1")
    A.label(nw)


WSP, IN, D, MID, TMP = 88, 24, 40, 72, 168
DY, W, TT = 72, 104, 136
M_, SPC, CJ, SGN = T0, T1, T2, T3
K0 = E_("K0", 16)


MID_ = 6 <= K0 < 16
END = K0 >= 16
LPRIO = E_('LPRIO', 3)


def img(i):
    ka = 8*(i >> 2) + (i & 3)
    return (VA1, ka*1024) if i < 8 else (VA8, 0) if i == 8 else (VA2, (27 - ka)*1024)


def aux_pre(A):
    A(f"v_mov_b32 v{SQ}, {L_SYNC + 16}\ns_lshl_b32 s{T4}, s{W_}, 2\nv_add_u32 v{SO}, s{T4}, v{SQ}")
    A("v_and_b32 v8, 31, v1\nv_lshrrev_b32 v9, 5, v1\nv_and_b32 v10, 1, v1")
    A(f"v_lshrrev_b32 v11, 1, v8\nv_lshlrev_b32 v{VA1}, 6, v11\nv_lshl_add_u32 v{VA1}, v10, 4, v{VA1}\nv_lshl_add_u32 v{VA1}, v9, 12, v{VA1}")
    A(f"v_add_u32 v11, v11, v10\nv_lshlrev_b32 v11, 6, v11\nv_lshl_add_u32 v11, v10, 4, v11\nv_lshl_add_u32 v11, v9, 12, v11\nv_sub_u32 v{VA2}, {5120 + 48}, v11")
    for r in (VA1, VA2):
        A(f"v_bfe_u32 v11, v{r}, 7, 1\nv_lshlrev_b32 v11, 5, v11\nv_xor_b32 v{r}, v{r}, v11")
    A(f"v_add_u32 v{VA8}, 11264, v{VA2}\nv_and_b32 v{VA8}, 0x3fff, v{VA8}")
    A(f"s_add_u32 s{T4}, s{T4}, {L_AX}")
    for r in (VA1, VA2, VA8):
        A(f"v_add_u32 v{r}, s{T4}, v{r}")
    A(f"v_bfe_u32 v11, v1, 3, 1\nv_lshlrev_b32 v11, 5, v11\nv_xor_b32 v{VLIN}, v2, v11")

    A("v_bfe_u32 v12, v1, 2, 1\nv_mul_u32_u24 v12, 2176, v12")
    A("v_bfe_u32 v13, v1, 3, 1\nv_lshl_add_u32 v12, v13, 6, v12\nv_lshl_add_u32 v12, v9, 8, v12")
    A("v_bfe_u32 v13, v1, 4, 1\nv_lshl_add_u32 v12, v13, 5, v12\nv_and_b32 v13, 3, v1\nv_lshl_add_u32 v12, v13, 3, v12")
    A(f"v_add_u32 v12, s{T8}, v12\nv_xor_b32 v13, 128, v12")
    A(f"s_lshl_b32 s{T4}, s2, 14\ns_lshl_b32 s{T5}, s{W_}, 12\ns_add_u32 s{T4}, s{T4}, s{T5}")
    srd(A, S0, WS, T4, WS_Z1, 0x1000)
    srd(A, S1, WS, T4, WS_Z3, 0x1000)
    A(f"v_and_b32 v14, 7, v1\nv_lshrrev_b32 v15, 3, v1\nv_xor_b32 v16, v14, v15\nv_lshlrev_b32 v16, 4, v16\nv_lshl_add_u32 v16, v14, 11, v16")
    A(f"s_lshr_b32 s{T4}, s{W_}, 1\ns_lshl_b32 s{T4}, s{T4}, 7\ns_and_b32 s{T5}, s{W_}, 1\ns_lshl_b32 s{T5}, s{T5}, 3\ns_add_u32 s{T4}, s{T4}, s{T5}\ns_add_u32 s{T4}, s{T4}, {L_W}")
    A(f"v_add_u32 v16, s{T4}, v16")
    A("v_lshlrev_b32 v15, 16, v15\nv_lshl_add_u32 v15, v14, 4, v15")
    A(f"s_lshl_b32 s{T4}, s{T3}, 7\ns_lshr_b32 s{T5}, s{W_}, 1\ns_lshl_b32 s{T5}, s{T5}, 6\ns_add_u32 s{T4}, s{T4}, s{T5}")
    A(f"s_and_b32 s{T5}, s{W_}, 1\ns_lshl_b32 s{T5}, s{T5}, 2\ns_add_u32 s{T4}, s{T4}, s{T5}\ns_lshl_b32 s{T4}, s{T4}, 13")
    A(f"s_lshl_b32 s{T5}, s{T0}, 10\ns_add_u32 s{T4}, s{T4}, s{T5}\ns_lshl_b32 s{T5}, s{T1}, 9\ns_add_u32 s{T4}, s{T4}, s{T5}\ns_lshl_b32 s{T5}, s{T2}, 7\ns_add_u32 s{T4}, s{T4}, s{T5}")
    srd(A, S4, WS, T4, WS_WT, 0x400000, T4)
    make_F(A, 104)
    make_T(A, T, 104, 0)


def aux_hook(A, vm, k):
    RR = lambda arr, kind: 104 + (arr*4 + kind)*2
    if k == K0:
        mark(A, 6)
        for s_ in range(4):
            for u in range(2):
                A(f"ds_read_b64_tr_b16 {v(IN+4*s_+2*u,2)}, v{12+u} offset:{s_*512}")
        for arr in range(2):
            for kind in range(4):
                A(f"ds_read_b64 {v(RR(arr,kind),2)}, v16 offset:{arr*1024 + kind*256}")
        A(f"s_mov_b32 s{T4}, 0x05040100\ns_mov_b32 s{T5}, 0x07060302")
        A("s_waitcnt lgkmcnt(8)")
        stage1(A, IN, D)
        A("s_waitcnt lgkmcnt(0)")
        for kap in range(4):
            o = 120 + 4*kap
            for e in range(2):
                for h2 in range(2):
                    kind = e + 2*h2
                    A(f"v_perm_b32 v{o+2*e+h2}, v{RR(1,kind)+kap//2}, v{RR(0,kind)+kap//2}, s{T4 + kap % 2}")
    if k == K0 + MID_:
        twiddle(A, D, MID, TMP)
        stage2(A, MID, D)
    if k == K0 + 1 + MID_:
        for i in range(16):
            A(f"v_cvt_pk_bf16_f32 v{MID+i}, v{D+i}, v{D+16+i}")
            a, o = img(i)
            A(f"ds_write_b32 v{a}, v{MID+i} offset:{o}")
        A("s_waitcnt lgkmcnt(0)")
    if k == K0 + 2 + MID_:
        A(f"v_add_u32 v8, s{T8}, v{VLIN}")
        for u in range(4):
            A(f"ds_read_b128 {v(MID+4*u,4)}, v8 offset:{u*1024}")
        for kap in range(4):
            A(f"s_mov_b32 s{CNT}, {kap*8192}")
            vm.op(f"buffer_store_dwordx4 {v(120+4*kap,4)}, v15, {r4(S4)}, s{CNT} offen sc1", "ast")
        for u in range(4):
            A(f"s_waitcnt lgkmcnt({3-u})")
            vm.op(f"buffer_store_dwordx4 {v(MID+4*u,4)}, v2, {r4(S0)}, 0 offen offset:{u*1024} sc1", "ast")
        nw = uid("nw")
        A(f"s_cmp_lg_u32 s{W_}, 3\ns_cbranch_scc1 {nw}")
        A(f"s_lshr_b32 s{T4}, s2, 7\ns_sub_u32 s{T4}, 513, s{T4}\ns_lshl_b32 s{T4}, s{T4}, 13\ns_and_b32 s{T5}, s2, 127\ns_lshl_b32 s{T5}, s{T5}, 6\ns_add_u32 s{T4}, s{T4}, s{T5}")
        srd(A, S4, WS, T4, WS_WT, 64)
        A(f"v_lshlrev_b32 v{WSP}, 16, v{WSP}\nv_lshlrev_b32 v{WSP+1}, 16, v{WSP+1}\nv_lshlrev_b32 v8, 1, v1")
        A(f"v_add_f32_dpp v{WSP+2}, v{WSP}, v{WSP} quad_perm:[1,0,3,2] row_mask:0xf bank_mask:0xf")
        A(f"v_subrev_f32_dpp v{WSP+3}, v{WSP+1}, v{WSP+1} quad_perm:[1,0,3,2] row_mask:0xf bank_mask:0xf")
        A(f"v_mul_f32 v{WSP+2}, 0.5, v{WSP+2}\nv_mul_f32 v{WSP+3}, 0.5, v{WSP+3}")
        A(f"v_cvt_pk_bf16_f32 v{WSP}, v{WSP+2}, v{WSP+3}")
        A("s_mov_b32 exec_lo, 0x55555555\ns_mov_b32 exec_hi, 0")
        A(f"buffer_store_dword v{WSP}, v8, {r4(S4)}, 0 offen sc1")
        A("s_mov_b64 exec, -1")
        A.label(nw)
        if not (END or MID_):
            A("v_mov_b32 v20, 0")
            vm.op(f"global_load_dword v21, v20, {sp(DBG)} sc1", "nonce")
        mark(A, 2)
    KS = 99 if END or MID_ else K0 + 3 + LA
    if k == KS:
        x, y = uid("sg"), uid("sg")
        A(f"v_readfirstlane_b32 s{NONCE}, v21\ns_cmp_lg_u32 s{NONCE}, 0\ns_cbranch_scc1 {y}")
        get_nonce(A, 20)
        A.label(y)
        A(f"s_cmp_lg_u32 s{W_}, 0\ns_cbranch_scc1 {x}")
        A(f"s_and_b32 s{T4}, s2, 15\ns_lshl_b32 s{T4}, s{T4}, 7\ns_add_u32 s{T4}, s{T4}, {CNT_A}\nv_mov_b32 v20, s{T4}\nv_mov_b32 v21, 1")
        A(f"s_mov_b64 exec, 1\nglobal_atomic_add v22, v20, v21, {sp(WS)} sc0 sc1\ns_mov_b64 exec, -1")
        A.label(x)
    if k == (5 if END or MID_ else KS + 1):
        make_T(A, TT, 104, 1)
    if k == (19 if END or MID_ else KS + 2):
        A(f"s_and_b32 s{M_}, s2, 7\ns_lshl_b32 s{M_}, s{M_}, 5\ns_lshr_b32 s{T4}, s2, 3\ns_add_u32 s{M_}, s{M_}, s{T4}")
        A(f"s_lshr_b32 s{T4}, s{W_}, 1\ns_xor_b32 s{T4}, s{T4}, s{W_}\ns_and_b32 s{T4}, s{T4}, 1")
        A(f"s_or_b32 s{T5}, s{T4}, s{M_}\ns_cmp_eq_u32 s{T5}, 0\ns_cselect_b32 s{SPC}, 1, 0")
        A(f"s_lshl_b32 s{T5}, s{M_}, 1\ns_add_u32 s{T4}, s{T4}, s{T5}")
        A(f"s_lshr_b32 s{T5}, s{W_}, 1\ns_sub_u32 s{T9}, 513, s{T5}\ns_cmp_eq_u32 s{SPC}, 1\ns_cselect_b32 s{T4}, s{T9}, s{T4}\ns_cselect_b32 s{T5}, 0, s{T5}")
        A(f"s_lshl_b32 s{CJ}, s{T5}, 31\ns_or_b32 s{SGN}, s{CJ}, 0x3f800000\ns_lshl_b32 s{T4}, s{T4}, 13")
        srd(A, S2, WS, T4, WS_WT, 0x2000)
        A(f"s_lshl_b32 s{T4}, s{W_}, 20\ns_lshl_b32 s{T5}, s{M_}, 6\ns_add_u32 s{T4}, s{T4}, s{T5}")
        srd(A, S3, WS, T4, WS_Z1, 0x100000, T5)
        srd(A, S4, WS, T4, WS_Z3, 0x100000, T5)
        A("v_lshrrev_b32 v8, 2, v1\nv_lshlrev_b32 v8, 14, v8\nv_and_b32 v9, 3, v1\nv_lshrrev_b32 v10, 4, v1\nv_xor_b32 v9, v9, v10\nv_lshl_add_u32 v14, v9, 4, v8")
        A(f"v_and_b32 v8, 31, v1\nv_bfe_u32 v9, v1, 2, 2\nv_xor_b32 v9, s{W_}, v9\nv_lshlrev_b32 v9, 4, v9\nv_lshl_add_u32 v9, v8, 6, v9")
        A(f"v_lshrrev_b32 v8, 5, v1\nv_lshl_add_u32 v9, v8, 11, v9\nv_add_u32 v15, {L_AX}, v9")
        A(f"s_lshl_b32 s{T4}, s{W_}, 13\ns_add_u32 s{T4}, s{T4}, {L_AX}\nv_add_u32 v16, s{T4}, v2")
        A(f"s_xor_b32 s{T5}, s{T4}, {3 << 13}\ns_cmp_eq_u32 s{SPC}, 1\ns_cselect_b32 s{T5}, s{T4}, s{T5}\nv_add_u32 v17, s{T5}, v2")
        A(f"v_add_u32 v18, s{T8}, v2")
        for kk in range(16):
            A(f"v_pk_mul_f32 {v(TT+2*kk,2)}, {sp(CJ)}, {v(TT+2*kk,2)} op_sel:[1,0]")
    if k == KS + 1 + LA:
        x = uid("sg")
        A(f"s_cmp_lg_u32 s{W_}, 0\ns_cbranch_scc1 {x}")
        A(f"v_readfirstlane_b32 s{T4}, v22\ns_cmp_lg_u32 s{T4}, 15\ns_cbranch_scc1 {x}")
        A(f"v_add_u32 v20, {FLG_A - CNT_A}, v20\nv_mov_b32 v21, s{NONCE}")
        A(f"s_mov_b64 exec, 1\nglobal_store_dword v20, v21, {sp(WS)} sc1\ns_mov_b64 exec, -1")
        A.label(x)
    assert END or (MID_ and K0 + 3 <= 15) or KS + 1 + LA < 14
    if k == 14 and not (END or MID_):
        A(f"v_and_b32 v20, 15, v1\nv_lshlrev_b32 v20, 7, v20\nv_add_u32 v20, {FLG_A}, v20")
        vm.op(f"global_load_dword v21, v20, {sp(WS)} sc1", "poll")


def a2_loads(A):
    for u in range(4):
        A(f"s_add_u32 m0, s{T8}, {u*1024}\ns_mov_b32 s{T4}, {u << 18}")
        A(f"buffer_load_dwordx4 v14, {r4(S3)}, s{T4} offen sc1 lds")
    A(f"s_movk_i32 s{T4}, 0x1000")
    for it in range(8):
        A(f"buffer_load_dwordx4 {v(W+4*it,4)}, v2, {r4(S2)}, {'0' if it < 4 else f's{T4}'} offen offset:{(it & 3)*1024} sc1")


def aux_rest(A, vm):
    def phase(cnt, flg):
        A("s_waitcnt vmcnt(0)")
        if E_("AM", 0) and cnt == CNT_A:
            mark(A, 5)
        p = l_arrive(A)
        x = uid("ph")
        A(f"s_cmp_lg_u32 s{W_}, 0\ns_cbranch_scc1 {x}")
        l_check(A, p)
        y, pl_, nok = uid("sg"), uid("sp"), uid("nok")
        A(f"s_and_b32 s{T4}, s2, 15\ns_lshl_b32 s{T5}, s{T4}, 7\ns_add_u32 s{T5}, s{T5}, {cnt}")
        A(f"s_add_u32 s{MSK}, s{WS}, s{T5}\ns_addc_u32 s{MSK+1}, s{WS+1}, 0\ns_mov_b32 s{T5}, 1")
        A(f"s_atomic_add s{T5}, {sp(MSK)}, 0x0 glc")
        A(f"s_lshl_b32 s{T4}, s{T4}, 2\ns_add_u32 s{T4}, s{T4}, {flg}\nv_lshl_add_u32 v20, v1, 7, s{T4}\nv_mov_b32 v21, s{NONCE}")
        A(f"s_and_b32 s{T4}, s2, 63\ns_lshl_b32 s{T4}, s{T4}, 7\ns_add_u32 s{T4}, s{T4}, {flg}")
        A("s_waitcnt lgkmcnt(0)")
        A(f"s_cmp_lg_u32 s{T5}, 15\ns_cbranch_scc1 {y}")
        A(f"global_store_dword v20, v21, {sp(WS)} sc1")
        A.label(y)
        if E_("AM", 0) and cnt == CNT_A:
            mark(A, 6)
        A(f"s_add_u32 s{MSK}, s{WS}, s{T4}\ns_addc_u32 s{MSK+1}, s{WS+1}, 0\ns_mov_b32 s{T4}, s{NONCE}\ns_mov_b32 s{T5}, s{NONCE}\ns_mov_b32 s{CNT}, 0")
        A(f"s_branch {pl_}")
        A.label(nok)
        A(f"s_add_u32 s{CNT}, s{CNT}, 1\ns_cmp_ge_u32 s{CNT}, {SPIN_MAX}\ns_cbranch_scc1 {x}")
        if SLP_A:
            A(f"s_sleep {SLP_A}")
        A.label(pl_)
        A(f"s_load_dwordx16 s[4:19], {sp(MSK)}, 0x0 glc\ns_waitcnt lgkmcnt(0)")
        for q in range(8):
            A(f"s_cmp_eq_u64 s[{4+2*q}:{5+2*q}], {sp(T4)}\ns_cbranch_scc0 {nok}")
        A.label(x)
        l_sync(A)
    if END:
        aux_issue(A, vm)
        A("s_barrier\ns_barrier")
        A(f"s_setprio {LPRIO}")
        get_nonce(A, 20)
        for k in range(3):
            l_sync(A)
            aux_hook(A, vm, K0 + k)
        aux_hook(A, vm, 19)
        phase(CNT_A, FLG_A)
        a2_loads(A)
    elif MID_:
        aux_hook(A, vm, 19)
        A("s_barrier\ns_barrier")
        A(f"s_setprio {LPRIO}")
        get_nonce(A, 20)
        phase(CNT_A, FLG_A)
        a2_loads(A)
    else:
        late, go = uid("l"), uid("g")
        A("s_waitcnt vmcnt(0)")
        A(f"v_cmp_ne_u32 vcc, s{NONCE}, v21")
        A(f"s_cbranch_vccnz {late}")
        a2_loads(A)
        A(f"s_barrier\ns_barrier\ns_branch {go}")
        A.label(late)
        A("s_barrier\ns_barrier")
        wait_cnt(A, 20, 21, SLP_A)
        a2_loads(A)
        A.label(go)
        A(f"s_setprio {LPRIO}")
    mark(A, 7)
    A("s_waitcnt vmcnt(8)")
    if E_("AM", 0):
        mark(A, 1)
    l_sync(A)
    INS = 72
    for s_ in range(4):
        A(f"ds_read_b128 {v(INS+4*s_,4)}, v15 offset:{s_*4096}")
    A("s_waitcnt lgkmcnt(0)")
    if E_("AM", 0) == 2:
        mark(A, 2)
    p6 = l_arrive(A)
    A(f"s_lshl_b32 s{T4}, s{SPC}, 31\ns_or_b32 s{T4}, s{T4}, s{CJ}")
    fl, nwr = uid("fft"), uid("nwr")
    A.label(fl)
    for i in range(16):
        A(f"v_xor_b32 v{IN+i}, s{T4}, v{INS+i}")
    stage1(A, IN, D)
    twiddle(A, D, IN, TMP)
    stage2(A, IN, D)
    l_check(A, p6)
    if E_("AM", 0) == 2:
        mark(A, 5)
    A(f"s_cmp_eq_u32 s{SPC}, 2\ns_cbranch_scc1 {nwr}")
    for c in range(8):
        A(f"ds_write_b128 v16, {v(D+4*c,4)} offset:{c*1024}")
    A(f"s_cmp_eq_u32 s{SPC}, 0\ns_cbranch_scc1 {nwr}")
    A(f"s_mov_b32 s{SPC}, 2\ns_mov_b32 s{T4}, 0\ns_branch {fl}")
    A.label(nwr)
    A("s_waitcnt lgkmcnt(0)")
    l_sync(A)
    for c in range(8):
        A(f"ds_read_b128 {v(DY+4*c,4)}, v17 offset:{c*1024}")
    A("s_waitcnt vmcnt(0) lgkmcnt(0)")
    if E_("AM", 0):
        mark(A, 4)
    p8 = l_arrive(A)
    for i in range(16):
        w = W + 2*i
        r1, i1, r2, i2, Ar, Ai, Or, Oi = (TMP + 8*(i & 1) + c for c in range(8))
        A(f"v_lshlrev_b32 v{r1}, 16, v{w}\nv_and_b32 v{i1}, 0xffff0000, v{w}")
        A(f"v_lshlrev_b32 v{r2}, 16, v{w+1}\nv_and_b32 v{i2}, 0xffff0000, v{w+1}")
        Dr, Di, Gr, Gi = r1, i1, r2, i2
        Xr, Xi, Yr, Yi, rho, sg = D+i, D+16+i, DY+i, DY+16+i, TT+i, TT+16+i
        A(f"v_add_f32 v{Ar}, v{r1}, v{r2}\nv_add_f32 v{Ai}, v{i1}, v{i2}")
        A(f"v_sub_f32 v{Dr}, v{r1}, v{r2}\nv_sub_f32 v{Di}, v{i1}, v{i2}")
        A(f"v_mul_f32 v{Gr}, v{sg}, v{Xr}\nv_mul_f32 v{Gi}, v{sg}, v{Xi}")
        A(f"v_mul_f32 v{Or}, v{Ar}, v{Xr}\nv_mul_f32 v{Oi}, v{Ar}, v{Xi}")
        A(f"v_fma_f32 v{Gr}, -v{rho}, v{Yi}, v{Gr}\nv_fmac_f32 v{Gi}, v{rho}, v{Yr}")
        A(f"v_fma_f32 v{Or}, -v{Ai}, v{Xi}, v{Or}\nv_fmac_f32 v{Oi}, v{Ai}, v{Xr}")
        A(f"v_fmac_f32 v{Or}, v{Dr}, v{Gr}\nv_fmac_f32 v{Oi}, v{Dr}, v{Gi}")
        A(f"v_fma_f32 v{Or}, -v{Di}, v{Gi}, v{Or}\nv_fmac_f32 v{Oi}, v{Di}, v{Gr}")
        A(f"v_cvt_pk_bf16_f32 v{IN+i}, v{Oi}, v{Or}")
    if E_("AM", 0) == 2:
        mark(A, 6)
    stage1(A, IN, D)
    twiddle(A, D, IN, TMP)
    stage2(A, IN, D)
    A(f"s_lshr_b32 s{T4}, s{CJ}, 16")
    l_check(A, p8)
    for s_ in range(4):
        for r in range(4):
            i = 4*s_ + r
            A(f"v_cvt_pk_bf16_f32 v{IN+i}, v{D+i}, v{D+16+i}\nv_xor_b32 v{IN+i}, s{T4}, v{IN+i}")
        A(f"ds_write_b128 v15, {v(IN+4*s_,4)} offset:{s_*4096}")
    A("s_waitcnt lgkmcnt(0)")
    if E_("AM", 0) == 2:
        mark(A, 7)
    l_sync(A)
    for u in range(4):
        A(f"ds_read_b128 {v(IN+4*u,4)}, v18 offset:{u*1024}")
    for u in range(4):
        A(f"s_mov_b32 s{T4}, {u << 18}\ns_waitcnt lgkmcnt({3-u})")
        A(f"buffer_store_dwordx4 {v(IN+4*u,4)}, v14, {r4(S4)}, s{T4} offen sc1")
    mark(A, 3)
    A(f"s_lshl_b32 s{T4}, s{T7}, 14")
    srd(A, S0, OUT, T4, 0, 0x4000)
    A("v_and_b32 v8, 31, v1\nv_lshrrev_b32 v9, 5, v1\nv_lshlrev_b32 v14, 2, v8\nv_lshl_add_u32 v14, v9, 9, v14")
    A(f"s_mov_b32 s{T4}, 0x35000000")
    for k in range(32):
        A(f"v_mul_f32 v{T+k}, s{T4}, v{T+k}")
    phase(CNT_B, FLG_B)
    mark(A, 8)
    A(f"s_mov_b32 m0, s{T8}")
    for u in range(4):
        A(f"buffer_load_dwordx4 v{VLIN}, {r4(S1)}, 0 offen offset:{u*1024} sc1 lds")
    A("s_waitcnt vmcnt(0)")
    l_sync(A)
    for i in range(16):
        a, o = img(i)
        A(f"ds_read_b32 v{IN+i}, v{a} offset:{o}")
    A("s_waitcnt lgkmcnt(0)")
    stage1(A, IN, D)
    twiddle(A, D, IN, TMP)
    stage2(A, IN, D)
    A(f"s_movk_i32 s{T4}, 0x2000")
    O = 72
    for i in range(16):
        o = O + 2*i
        A(f"v_cvt_pk_bf16_f32 v{o+1}, v{D+16+i}, v{D+i}")
        A(f"v_lshlrev_b32 v{o}, 16, v{o+1}\nv_and_b32 v{o+1}, 0xffff0000, v{o+1}")
        off = (i >> 2)*1024 + (i & 3)*128
        A(f"buffer_store_dword v{o}, v14, {r4(S0)}, 0 offen offset:{off}")
        A(f"buffer_store_dword v{o+1}, v14, {r4(S0)}, s{T4} offen offset:{off}")


def cmul_sq(A, d, a, t):
    A(f"v_mul_f32 {v(t)}, {v(a+1)}, {v(a+1)}")
    A(f"v_mul_f32 {v(t+1)}, {v(a)}, {v(a+1)}")
    A(f"v_fma_f32 {v(d)}, {v(a)}, {v(a)}, -{v(t)}")
    A(f"v_add_f32 {v(d+1)}, {v(t+1)}, {v(t+1)}")


def horner(A, dr, di, L, pr, pi, er, ei, t):
    assert dr not in (pr, pi) and di not in (pr, pi)
    A(f"v_fma_f32 {v(t)}, {v(L)}, {v(pr)}, {v(er)}")
    A(f"v_fma_f32 {v(t+1)}, {v(L)}, {v(pi)}, {v(ei)}")
    A(f"v_fma_f32 {v(dr)}, -{v(L+1)}, {v(pi)}, {v(t)}")
    A(f"v_fma_f32 {v(di)}, {v(L+1)}, {v(pr)}, {v(t+1)}")


def loader(A, name, kidx):
    RA, RB, ROT, M0B, SOF, RV = 12, 20, 24, 25, 26, 176
    A(f"s_sub_u32 s{W_}, s{WAVE}, 4")
    A("v_lshrrev_b32 v2, 5, v1\nv_bfe_u32 v3, v1, 3, 2")
    A("v_and_b32 v4, 1, v3\nv_lshrrev_b32 v5, 1, v3")
    A("v_lshlrev_b32 v6, 5, v2\nv_lshl_add_u32 v6, v4, 4, v6\nv_add_u32 v6, v6, v5")
    A(f"s_lshr_b32 s{T0}, s{W_}, 1\ns_lshl_b32 s{T1}, s{T0}, 6\ns_and_b32 s{T2}, s{W_}, 1\ns_lshl_b32 s{T2}, s{T2}, 3\ns_add_u32 s{T1}, s{T1}, s{T2}")
    A(f"v_add_u32 v6, s{T1}, v6\nv_lshlrev_b32 v6, 11, v6")
    A(f"s_lshl_b32 s{T1}, s{T0}, 5")
    A(f"v_lshl_add_u32 v7, v2, 3, v3\nv_add_u32 v7, s{T1}, v7\nv_lshlrev_b32 v7, 11, v7")
    A("v_and_b32 v4, 7, v1\nv_lshrrev_b32 v5, 4, v1\nv_xor_b32 v4, v4, v5\nv_lshlrev_b32 v4, 4, v4")
    A("v_xor_b32 v5, 64, v4")
    for u in range(4):
        ch = 4 if u % 2 == 0 else 5
        A(f"v_add_u32 v{RV+u}, v6, v{ch}")
        if u:
            A(f"v_add_u32 v{RV+u}, {u*4096 - u*1024}, v{RV+u}")
        A(f"v_add_u32 v{RV+4+u}, v7, v{ch}")
        if u:
            A(f"v_add_u32 v{RV+4+u}, {(16*(u>>1) + 4*(u&1))*2048 - u*1024}, v{RV+4+u}")
    A(f"s_and_b32 s{T4}, s2, 7\ns_mul_i32 s{T4}, s{T4}, {XO*128}")
    A(f"s_add_u32 s{T0}, s{TI}, s{TJ}\ns_and_b32 s{T0}, s{T0}, {NP-1}\ns_mul_i32 s{T0}, s{T0}, {2048//NP}\ns_add_u32 s{T4}, s{T4}, s{T0}")
    if RI or RJ:
        A(f"s_mul_i32 s{T0}, s{TI}, {RI*128}\ns_add_u32 s{T4}, s{T4}, s{T0}\ns_mul_i32 s{T0}, s{TJ}, {RJ*128}\ns_add_u32 s{T4}, s{T4}, s{T0}")
    A(f"s_lshl_b32 s{T0}, s{TI}, 18\ns_lshl_b32 s{T1}, s{TJ}, 17")
    A("s_waitcnt lgkmcnt(0)")
    A(f"s_lshl_b32 s{M0B}, s{W_}, 12\ns_mov_b32 s{ROT}, s{T4}")
    srd(A, RA, BX, T0, 0, 0x40000)
    A(f"s_bitcmp1_b32 s{W_}, 0\ns_cselect_b32 s{T2}, s{BIM}, s{BRE}\ns_cselect_b32 s{T3}, s{BIM+1}, s{BRE+1}")
    srd(A, RB, T2, T1, 0, 0x20000)
    mark(A, 5)
    vm = VmCounter(A)

    def issue(k):
        slot = k % NS
        A(f"s_add_u32 m0, s{M0B}, {slot*32768}")
        A(f"s_add_u32 s{SOF}, s{ROT}, {k*128}\ns_and_b32 s{SOF}, s{SOF}, 0x7ff")
        for u in range(4):
            vm.op(f"buffer_load_dwordx4 v{RV+u}, {r4(RA)}, s{SOF} offen offset:{u*1024}{NTX if k < NTK else ''} lds", ("st", k))
        A(f"s_add_u32 m0, s{M0B}, {slot*32768 + 16384}")
        for u in range(4):
            vm.op(f"buffer_load_dwordx4 v{RV+4+u}, {r4(RB)}, s{SOF} offen offset:{u*1024}{NTX if k < NTK else ''} lds", ("st", k))
    AUXAT = E_("AUXAT", 3)
    issue(0)
    issued = 1
    if not NOAUX:
        aux_setup(A)
        aux_pre(A)
        if AUXAT == 1 and not END:
            aux_issue(A, vm)
    for k in range(-1, 16):
        if k >= 0:
            vm.wait_for(("st", k))
            A("s_barrier")
        if k in (0, 12):
            mark(A, 1 + k//4)
        while issued < min(16, k + LA + 1):
            issue(issued)
            issued += 1
            if not NOAUX and not END and issued == AUXAT:
                aux_issue(A, vm)
        if not NOAUX and k >= 0:
            assert K0 >= AUXAT
            aux_hook(A, vm, k)
    assert issued == 16
    if NOAUX:
        A("s_barrier\ns_barrier")
    else:
        aux_rest(A, vm)
    stamp_end(A, kidx, WAVE)
    A("s_endpgm")


def gemm_waves(A, name, kidx):
    ACC = lambda T_, c: 64 + (T_*2 + c)*16
    FR = lambda X, f: 32 + X*16 + f*4
    AD = lambda st, op, ks: 128 + st*8 + op*4 + ks
    LAM, KC, L16, L128, L256 = 24, 26, 28, 30, 2
    WT_, WP = T8, T6
    A(f"s_lshr_b32 s{WT_}, s{WAVE}, 1\ns_and_b32 s{WP}, s{WAVE}, 1")
    A("v_and_b32 v6, 31, v1\nv_lshrrev_b32 v5, 5, v1")
    A("v_and_b32 v4, 0x13, v6")
    A("v_bfe_u32 v7, v6, 2, 1\nv_lshl_or_b32 v4, v7, 3, v4")
    A("v_bfe_u32 v7, v6, 3, 1\nv_lshl_or_b32 v4, v7, 2, v4")
    A(f"s_lshl_b32 s{T0}, s{TJ}, 6\ns_lshl_b32 s{T1}, s{WP}, 5\ns_add_u32 s{T0}, s{T0}, s{T1}")
    A(f"v_add_u32 v4, s{T0}, v4")
    A("v_lshlrev_b32 v7, 1, v4\nv_lshlrev_b32 v11, 4, v1")
    A("s_waitcnt lgkmcnt(0)")
    A(f"global_load_ushort v8, v7, {sp(LRE)}\nglobal_load_ushort v9, v7, {sp(LIM)}\nglobal_load_ushort v10, v7, {sp(LDT)}")
    nn = uid("nn")
    A(f"s_lshl_b32 s{T0}, s2, 3\ns_add_u32 s{T0}, s{T0}, s{WAVE}\ns_cmp_lg_u32 s{T0}, 1")
    A(f"s_cbranch_scc1 {nn}")
    A(f"s_load_dword s{T0}, {sp(WS)}, {WS_NONCE}")
    A(f"v_mov_b32 v16, 0\nv_and_b32 v17, 31, v1\nv_lshlrev_b32 v17, 7, v17\nv_add_u32 v17, {WS_CNT}, v17")
    A(f"global_store_dword v17, v16, {sp(WS)} sc1")
    A("s_waitcnt vmcnt(0) lgkmcnt(0)")
    A(f"s_add_u32 s{T0}, s{T0}, 1\ns_cmp_eq_u32 s{T0}, 0\ns_cselect_b32 s{T0}, 1, s{T0}")
    A(f"v_mov_b32 v17, s{T0}")
    A(f"s_mov_b64 exec, 1\nglobal_store_dword v16, v17, {sp(DBG)} sc1")
    A(f"global_store_dword v16, v17, {sp(WS)} offset:{WS_NONCE}\ns_mov_b64 exec, -1")
    A.label(nn)
    if CODEPF:
        pf = uid("pf")
        A(f"s_cmp_lg_u32 s{WAVE}, 0")
        A(f"s_cbranch_scc1 {pf}")
        A(f"s_lshr_b32 s{T0}, s2, 3\ns_lshl_b32 s{T0}, s{T0}, 11\nv_and_b32 v12, 15, v1\nv_lshl_add_u32 v12, v12, 7, s{T0}")
        A(f"v_min_u32 v12, L_{name}_end-{name}, v12")
        pc = uid("pc")
        A(f"s_getpc_b64 {sp(T0)}")
        A.label(pc)
        A(f"s_sub_u32 s{T0}, s{T0}, {pc}-{name}\ns_subb_u32 s{T1}, s{T1}, 0")
        A(f"global_load_dword v247, v12, {sp(T0)}")
        A.label(pf)
    A("v_bfe_u32 v7, v6, 1, 3\nv_xor_b32 v7, v7, v5\nv_lshlrev_b32 v7, 4, v7\nv_lshl_add_u32 v7, v6, 7, v7")
    A(f"s_lshl_b32 s{T0}, s{WT_}, 13\ns_lshl_b32 s{T1}, s{WP}, 13\ns_add_u32 s{T1}, s{T1}, 16384")
    for ks in range(4):
        A(f"v_xor_b32 v12, {ks << 5}, v7")
        A(f"v_add_u32 v{AD(0,0,ks)}, s{T0}, v12\nv_add_u32 v{AD(0,1,ks)}, s{T1}, v12")
        A(f"v_add_u32 v{AD(1,0,ks)}, 0x10000, v{AD(0,0,ks)}\nv_add_u32 v{AD(1,1,ks)}, 0x10000, v{AD(0,1,ks)}")
    for r in range(64, 128, 2):
        A(f"v_mov_b64 v[{r}:{r+1}], 0")
    A(f"v_mov_b32 v34, {L_SYNC}\nv_mov_b64 v[36:37], 0\nv_mov_b64 v[38:39], 0")
    A("s_mov_b64 exec, 1\nds_write_b128 v34, v[36:39]\nds_write_b128 v34, v[36:39] offset:16\ns_mov_b64 exec, -1")
    A("v_lshlrev_b32 v12, 4, v5\nv_sub_u32 v12, v6, v12\nv_mov_b32 v13, 0x3f80\nv_mov_b32 v14, 1.0")
    for c in range(8):
        A(f"v_cmp_eq_u32 vcc, {c}, v12\nv_cmp_eq_u32 {sp(T0)}, {c+8}, v12")
        A(f"v_cndmask_b32 v{248+c}, 0, v13, vcc\nv_cndmask_b32 v{248+c}, v{248+c}, v14, {sp(T0)}")
    srd(A, S0, WS, None, WS_EG, 0x40000)
    srd(A, S1, WS, None, WS_HT, 0x800000)
    A("s_waitcnt vmcnt(0)")
    A("v_lshlrev_b32 v8, 16, v8\nv_lshlrev_b32 v9, 16, v9\nv_lshlrev_b32 v10, 16, v10")
    A("v_mul_f32 v10, 0x3fb8aa3b, v10\nv_exp_f32 v10, v10")
    A("v_cvt_pk_bf16_f32 v10, v10, v10\nv_lshlrev_b32 v10, 16, v10")
    A("v_mul_f32 v12, v10, v8\nv_mul_f32 v13, v10, v9")
    A("v_mul_f32 v12, 0x3fb8aa3b, v12\nv_exp_f32 v12, v12")
    A("v_mul_f32 v13, 0.15915494, v13\nv_rndne_f32 v14, v13\nv_sub_f32 v13, v13, v14")
    A("v_cos_f32 v14, v13\nv_sin_f32 v15, v13")
    A(f"v_mul_f32 v{LAM}, v12, v14\nv_mul_f32 v{LAM+1}, v12, v15")
    A(f"v_add_f32 v12, -1.0, v{LAM}")
    A("v_mul_f32 v13, v8, v8\nv_fma_f32 v13, v9, v9, v13\nv_rcp_f32 v13, v13")
    A("v_add_f32 v13, v13, v13")
    A(f"v_mul_f32 v14, v12, v8\nv_fma_f32 v14, v{LAM+1}, v9, v14\nv_mul_f32 v{KC}, v14, v13")
    A(f"v_mul_f32 v14, v{LAM+1}, v8\nv_fma_f32 v14, -v12, v9, v14\nv_mul_f32 v{KC+1}, v14, v13")
    L32 = 20
    cmul_sq(A, L16, LAM, 12)
    for _ in range(3):
        cmul_sq(A, L16, L16, 12)
    cmul_sq(A, L32, L16, 12)
    cmul_sq(A, L128, L32, 12)
    cmul_sq(A, L128, L128, 12)
    cmul_sq(A, L256, L128, 12)

    def reads(k, ks, which):
        slot = k % NS
        st, off = slot >> 1, (slot & 1)*32768
        X = ks & 1
        for f in which:
            op = 0 if f in (0, 3) else 1
            hi = 4096 if f in (2, 3) else 0
            A(f"ds_read_b128 {v(FR(X, f), 4)}, v{AD(st, op, ks)} offset:{off + hi}")

    def mfma(T_, c, X):
        a = FR(X, 0 if T_ == 0 else 3)
        b = FR(X, 1 if c == 0 else 2)
        A(f"{MF} {v(ACC(T_,c),16)}, {v(a,4)}, {v(b,4)}, {v(ACC(T_,c),16)}")
    A("s_waitcnt lgkmcnt(0)\ns_barrier")
    reads(0, 0, [0, 1, 2, 3])
    for k in range(16):
        for ks in range(4):
            X = ks & 1
            nk, nks = (k, ks+1) if ks < 3 else (k+1, 0)
            have = nk < 16
            if ks == 3:
                A("s_waitcnt lgkmcnt(0)\ns_barrier")
            else:
                A("s_waitcnt lgkmcnt(2)")
            if k == 12 and ks == 0:
                A("v_mov_b32 v12, 0")
                A(f"global_load_dword v13, v12, {sp(DBG)} sc1")
            mfma(0, 0, X)
            if have:
                reads(nk, nks, [0, 1])
            if ks != 3:
                A("s_waitcnt lgkmcnt(3)")
            mfma(0, 1, X)
            if have:
                reads(nk, nks, [2, 3])
            if ks != 3:
                A("s_waitcnt lgkmcnt(4)")
            mfma(1, 0, X)
            mfma(1, 1, X)
    mark(A, 1)
    U = lambda c, idx: ACC(idx >> 3, c) + 2*(idx & 7)
    bc_a = "op_sel_hi:[0,1,1]"
    bc_b = "op_sel:[1,0,0]"
    TT = 40

    def pk_step(L, dr, di, pr, pi, ur, ui):
        A(f"v_pk_fma_f32 {v(TT,2)}, {v(L,2)}, {v(pr,2)}, {v(ur,2)} {bc_a}")
        A(f"v_pk_fma_f32 {v(TT+2,2)}, {v(L,2)}, {v(pi,2)}, {v(ui,2)} {bc_a}")
        A(f"v_pk_fma_f32 {v(dr,2)}, {v(L,2)}, {v(pi,2)}, {v(TT,2)} {bc_b} {N0}")
        A(f"v_pk_fma_f32 {v(di,2)}, {v(L,2)}, {v(pr,2)}, {v(TT+2,2)} {bc_b}")
    A(f"s_lshl_b32 s{T0}, s{WP}, 10\ns_add_u32 s{T0}, s{T0}, {L_XCH}\ns_lshl_b32 s{T1}, s{WT_}, 4")
    A(f"v_lshl_add_u32 v14, v6, 5, s{T0}")
    A(f"v_lshl_add_u32 v15, v5, 3, v14\nv_add_u32 v15, s{T1}, v15")
    for idx in range(1, 16):
        pk_step(LAM, U(0, idx), U(1, idx), U(0, idx-1), U(1, idx-1), U(0, idx), U(1, idx))
    EA = (U(0, 15), U(1, 15))
    horner(A, 32, 33, L16, EA[0], EA[1], EA[0]+1, EA[1]+1, TT)
    A("ds_write_b64 v15, v[32:33]")
    A(f"s_sub_u32 s{T0}, s{TI}, 1\ns_lshl_b32 s{T0}, s{T0}, 14")
    A("v_lshlrev_b32 v16, 4, v4\nv_lshlrev_b32 v17, 14, v5\nv_sub_u32 v17, v16, v17")
    A(f"v_add_u32 v128, s{T0}, v17")
    A(f"s_lshl_b32 s{T0}, s{TI}, 14\nv_add_u32 v16, s{T0}, v16")
    A("v_lshlrev_b32 v17, 30, v5\nv_or_b32 v16, v16, v17")
    A("s_waitcnt lgkmcnt(0)\ns_barrier")
    SG = 144
    A(f"ds_read_b128 {v(SG,4)}, v14\nds_read_b128 {v(SG+4,4)}, v14 offset:16")
    nl, ng = uid("n"), uid("ng")
    A.label(nl)
    A("s_waitcnt vmcnt(0)")
    A(f"v_readfirstlane_b32 s{NONCE}, v13")
    A(f"s_cmp_lg_u32 s{NONCE}, 0")
    A(f"s_cbranch_scc1 {ng}")
    A(f"global_load_dword v13, v12, {sp(DBG)} sc1")
    A(f"s_branch {nl}")
    A.label(ng)
    P = 44
    A(f"v_mov_b32 v{P+2}, s{NONCE}\nv_mov_b32 v{P+3}, s{NONCE}")
    A(f"s_getreg_b32 s{T0}, hwreg(HW_REG_XCC_ID, 0, 4)\ns_lshl_b32 s{T1}, s{NONCE}, 4\ns_or_b32 s{LOCAL}, s{T0}, s{T1}\nv_mov_b32 v60, s{LOCAL}")
    A(f"s_lshr_b32 s{PG}, s{TJ}, 3")
    A(f"s_lshl_b32 s{T0}, s{TI}, 11\ns_add_u32 s{T0}, s{T0}, {FLG_X}\ns_lshl_b32 s{T1}, s{TJ}, 7\ns_add_u32 s{T1}, s{T1}, s{T0}\nv_mov_b32 v61, s{T1}")
    A(f"s_lshl_b32 s{T1}, s{PG}, 10\ns_add_u32 s{T0}, s{T0}, s{T1}\nv_and_b32 v62, 7, v1\nv_lshl_add_u32 v62, v62, 7, s{T0}")
    A("s_waitcnt lgkmcnt(0)")
    horner(A, 48, 49, L32, SG, SG+1, SG+2, SG+3, TT)
    horner(A, 50, 51, L32, 48, 49, SG+4, SG+5, TT)
    horner(A, P, P+1, L32, 50, 51, SG+6, SG+7, TT)
    np_ = uid("np")
    A(f"s_cmp_lg_u32 s{WT_}, 0")
    A(f"s_cbranch_scc1 {np_}")
    A(f"buffer_store_dwordx4 {v(P,4)}, v16, {r4(S0)}, 0 offen sc1")
    A(f"s_cmp_lg_u32 s{WP}, 0")
    A(f"s_cbranch_scc1 {np_}")
    A(f"s_mov_b64 exec, 1\nglobal_store_dword v61, v60, {sp(WS)} sc1\ns_mov_b64 exec, -1")
    A.label(np_)
    mark(A, 2)
    LB = 160
    A("v_mov_b32 v17, 0x40000000")
    for u in range(1, 8):
        A(f"v_subrev_u32 v{128+u}, {u*32768}, v128")
    for u in range(8):
        A(f"v_cmp_le_i32 vcc, 0, v{128+u}")
        A(f"v_cndmask_b32 v{136+u}, 0, v{P+2}, vcc")
        A(f"v_cndmask_b32 v{128+u}, v17, v{128+u}, vcc")
    def lbloads():
        for u in range(8):
            A(f"buffer_load_dwordx4 {v(LB+4*u,4)}, v{128+u}, {r4(S0)}, 0 offen sc1")
        A(f"global_load_dword v63, v62, {sp(WS)} sc1")
    A(f"s_lshl_b32 s{T0}, s{TI}, 1\ns_add_u32 s{T0}, s{T0}, s{WT_}\ns_lshl_b32 s{T0}, s{T0}, 12\ns_add_u32 s{T0}, s{T0}, {FLG_H}")
    A(f"s_lshl_b32 s{T1}, s{PG}, 11\ns_add_u32 s{T1}, s{T1}, s{T0}\nv_and_b32 v18, 15, v1\nv_lshl_add_u32 v18, v18, 7, s{T1}")
    A(f"s_lshl_b32 s{T1}, s{TJ}, 8\ns_add_u32 s{T0}, s{T0}, s{T1}\ns_lshl_b32 s{T1}, s{WP}, 7\ns_add_u32 s{T0}, s{T0}, s{T1}\nv_mov_b32 v19, s{T0}")
    if FTOUCH:
        A(f"global_load_dword v246, v18, {sp(WS)} sc1")
    if LBAT == 0:
        lbloads()
    O = 52
    PW = lambda idx: 208 + 2*idx
    A(f"v_mul_f32 v{O}, v{KC+1}, v{LAM+1}\nv_mul_f32 v{O+1}, v{KC+1}, v{LAM}")
    A(f"v_fma_f32 v{PW(0)}, v{KC}, v{LAM}, -v{O}\nv_fma_f32 v{PW(0)+1}, v{KC}, v{LAM+1}, v{O+1}")
    for idx in range(16):
        d = (U(0, idx), U(1, idx))
        A(f"v_pk_mul_f32 {v(O,2)}, {v(KC,2)}, {v(d[0],2)} op_sel_hi:[0,1]")
        A(f"v_pk_mul_f32 {v(O+2,2)}, {v(KC,2)}, {v(d[1],2)} op_sel_hi:[0,1] neg_lo:[1,0] neg_hi:[1,0]")
        if idx == 15:
            A(f"v_mov_b32 v56, v{d[0]}\nv_mov_b32 v57, v{d[1]}")
        if idx < 15:
            A(f"v_mul_f32 v58, v{PW(idx)+1}, v{LAM+1}\nv_mul_f32 v59, v{PW(idx)+1}, v{LAM}")
        A(f"v_pk_fma_f32 {v(O+2,2)}, {v(KC,2)}, {v(d[0],2)}, {v(O+2,2)} {bc_b} {N0}")
        A(f"v_pk_fma_f32 {v(d[0],2)}, {v(KC,2)}, {v(d[1],2)}, {v(O,2)} {bc_b} {N0}")
        A(f"v_mov_b64 {v(d[1],2)}, {v(O+2,2)}")
        if idx < 15:
            A(f"v_fma_f32 v{PW(idx+1)}, v{PW(idx)}, v{LAM}, -v58\nv_fma_f32 v{PW(idx+1)+1}, v{PW(idx)}, v{LAM+1}, v59")
        if idx + 1 == LBAT:
            lbloads()
    A(f"s_mov_b32 s{T9}, 0")
    pl, pd = uid("poll"), uid("polled")
    A.label(pl)
    A(f"s_mov_b64 {sp(T0)}, 0")
    for u in range(8):
        A(f"s_waitcnt vmcnt({8-u})")
        A(f"v_cmp_ne_u32 vcc, v{LB+4*u+2}, v{136+u}")
        A(f"s_or_b64 {sp(T0)}, {sp(T0)}, vcc")
        A(f"v_cmp_ne_u32 vcc, v{LB+4*u+3}, v{136+u}")
        A(f"s_or_b64 {sp(T0)}, {sp(T0)}, vcc")
    A(f"s_waitcnt vmcnt(0)\nv_xor_b32 v63, v60, v63\nv_cmp_lt_u32 vcc, 15, v63")
    A(f"s_or_b64 {sp(T0)}, {sp(T0)}, vcc")
    A(f"s_add_u32 s{T9}, s{T9}, 1")
    A(f"s_cmp_eq_u64 {sp(T0)}, 0")
    A(f"s_cbranch_scc1 {pd}")
    A(f"s_cmp_ge_u32 s{T9}, {SPIN_MAX}")
    A(f"s_cbranch_scc1 {pd}")
    lbloads()
    A(f"s_branch {pl}")
    A.label(pd)
    A(f"v_cmp_ne_u32 vcc, 0, v63\ns_cmp_eq_u64 vcc, 0\ns_cselect_b32 s{LOCAL}, {0 if FORCE_REMOTE else 1}, 0")
    mark(A, 3)
    vm = VmCounter(A)
    if CTOUCH:
        ct = uid("ct")
        A(f"s_cmp_lt_u32 s{WAVE}, 2\ns_cbranch_scc1 {ct}")
        A(f"s_lshl_b32 s{T0}, s{PG}, 10\ns_bfe_u32 s{T1}, s2, 0x20001\ns_lshl_b32 s{T1}, s{T1}, 19\ns_add_u32 s{T0}, s{T0}, s{T1}")
        A(f"s_lshr_b32 s{T1}, s2, 3\ns_lshl_b32 s{T1}, s{T1}, 14\ns_add_u32 s{T0}, s{T0}, s{T1}")
        A(f"v_lshrrev_b32 v8, 3, v1\nv_lshlrev_b32 v8, 11, v8\nv_and_b32 v9, 7, v1\nv_lshl_add_u32 v8, v9, 7, v8\nv_add_u32 v8, s{T0}, v8")
        A(f"s_cmp_eq_u32 s{WP}, 0\ns_cselect_b32 s{T0}, s{CRE}, s{CIM}\ns_cselect_b32 s{T1}, s{CRE+1}, s{CIM+1}")
        A(f"global_load_dword v246, v8, {sp(T0)}")
        A.label(ct)
    H0, H1 = LB + 28, 48
    cur = (H0, H0+1)
    for u in range(6, -1, -1):
        d = (48, 49) if cur[0] == H0 else (H0, H0+1)
        horner(A, d[0], d[1], L256, cur[0], cur[1], LB+4*u, LB+4*u+1, TT)
        cur = d
    assert cur == (48, 49)
    A(f"v_mov_b32 v50, v48\nv_mov_b32 v51, v49")
    A(f"v_permlane32_swap_b32 v48, v50\nv_permlane32_swap_b32 v49, v51")
    PS = 192
    horner(A, PS, PS+1, L128, 50, 51, 48, 49, TT)
    for u in range(1, 4):
        horner(A, PS+2*u, PS+2*u+1, L32, PS+2*u-2, PS+2*u-1, SG+2*u-2, SG+2*u-1, TT)
    w0 = uid("wt0")
    A(f"s_cmp_eq_u32 s{WT_}, 0")
    A(f"s_cbranch_scc1 {w0}")
    A(f"v_mov_b64 {v(PS,2)}, {v(PS+4,2)}\nv_mov_b64 {v(PS+2,2)}, {v(PS+6,2)}")
    A.label(w0)
    A("v_cmp_eq_u32 vcc, 1, v5")
    G = 48
    A(f"v_cndmask_b32 v{G}, v{PS}, v{PS+2}, vcc")
    A(f"v_cndmask_b32 v{G+2}, v{PS+1}, v{PS+3}, vcc")
    horner(A, G+1, G+3, L16, G, G+2, 56, 57, TT)
    PK = lambda c, idx: 128 + 16*c + idx
    D = lambda c, X: 160 + 16*c if X == 0 else (192 if c == 0 else 32)
    A(f"s_lshl_b32 s{T0}, s{TI}, 1\ns_add_u32 s{T9}, s{T0}, s{WT_}\ns_lshl_b32 s{T0}, s{T9}, 18")
    A(f"s_lshl_b32 s{T1}, s{TJ}, 13\ns_add_u32 s{T0}, s{T0}, s{T1}\ns_lshl_b32 s{T1}, s{WP}, 11\ns_add_u32 s{T0}, s{T0}, s{T1}")

    def fix(idx):
        d = (U(0, idx), U(1, idx))
        pw = v(PW(idx), 2)
        A(f"v_pk_fma_f32 {v(d[0],2)}, {pw}, {v(G,2)}, {v(d[0],2)} {bc_a}")
        A(f"v_pk_fma_f32 {v(d[1],2)}, {pw}, {v(G+2,2)}, {v(d[1],2)} {bc_a} {N0}")
        A(f"v_pk_fma_f32 {v(d[0],2)}, {pw}, {v(G+2,2)}, {v(d[0],2)} {bc_b} {N0}")
        A(f"v_pk_fma_f32 {v(d[1],2)}, {pw}, {v(G,2)}, {v(d[1],2)} {bc_b} {N0}")
        A(f"v_cvt_pk_bf16_f32 v{PK(0,idx)}, v{d[0]}, v{d[0]+1}")
        A(f"v_cvt_pk_bf16_f32 v{PK(1,idx)}, v{d[1]}, v{d[1]+1}")

    def tr(X):
        for c in range(2):
            A(f"{MF} {v(D(c,X),16)}, {v(PK(c,8*X),4)}, v[248:251], 0")
            A(f"{MF} {v(D(c,X),16)}, {v(PK(c,8*X+4),4)}, v[252:255], {v(D(c,X),16)}")

    def st(X, c):
        A(f"s_add_u32 s{T1}, s{T0}, {X*131072 + c*4096}")
        q = 64 + (X*2 + c)*8
        for jj in range(8):
            A(f"v_cvt_pk_bf16_f32 v{q+jj}, v{D(c,X)+2*jj}, v{D(c,X)+2*jj+1}")
        A(f"buffer_store_dwordx4 {v(q,4)}, v11, {r4(S1)}, s{T1} offen sc1")
        A(f"buffer_store_dwordx4 {v(q+4,4)}, v11, {r4(S1)}, s{T1} offen offset:1024 sc1")
    for idx in range(8):
        fix(idx)
    tr(0)
    for idx in range(8, 12):
        fix(idx)
    st(0, 0)
    st(0, 1)
    for idx in range(12, 16):
        fix(idx)
    tr(1)
    st(1, 0)
    st(1, 1)
    mark(A, 4)
    M0B, RH, RCc, SH, SC = T7, T5, T4, T3, T2
    ACC2 = lambda nt: 32 + 16*nt
    CF = lambda X, nt: 96 + 16*X + 4*nt
    XR, CV = 128, 144
    HR = lambda s_: 148 + 4*(s_ % HD)
    for ks in range(4):
        A(f"v_xor_b32 v{20+ks}, {ks << 5}, v7")
        A(f"v_add_u32 v{24+ks}, 0x10000, v{20+ks}")
    A(f"s_lshl_b32 s{T0}, s{WP}, 3")
    A(f"v_lshl_add_u32 v17, v5, 2, s{T0}")
    A("v_lshlrev_b32 v28, 11, v17\nv_lshl_add_u32 v28, v6, 2, v28")
    A("v_lshlrev_b32 v29, 13, v17\nv_lshl_add_u32 v29, v6, 3, v29")
    A("v_lshlrev_b32 v30, 2, v6\nv_mov_b32 v2, v11")
    A(f"v_mov_b32 v12, {L_SYNC}\ns_lshl_b32 s{T0}, s{WAVE}, 2\nv_add_u32 v13, s{T0}, v12")
    A(f"s_xor_b32 s{T0}, s{WT_}, s{PG}\ns_xor_b32 s{T0}, s{T0}, 1\ns_lshl_b32 s{T0}, s{T0}, 6\ns_add_u32 s{T0}, s{T0}, s{WP}")
    A(f"v_lshrrev_b32 v8, 3, v1\nv_lshl_add_u32 v8, v8, 1, s{T0}\nv_lshlrev_b32 v8, 11, v8")
    A("v_and_b32 v9, 7, v1\nv_lshrrev_b32 v10, 4, v1\nv_xor_b32 v9, v9, v10\nv_lshlrev_b32 v9, 4, v9\nv_xor_b32 v10, 64, v9")
    for u in range(4):
        A(f"v_add_u32 v{CV+u}, v8, v{9 + (u & 1)}")
        if u:
            A(f"v_add_u32 v{CV+u}, {u*(16*2048 - 1024)}, v{CV+u}")
    A(f"s_and_b32 s{T0}, s{TJ}, 7\ns_lshl_b32 s{T0}, s{T0}, 18\ns_lshl_b32 s{T1}, s{PG}, 10\ns_add_u32 s{T0}, s{T0}, s{T1}")
    srd(A, S2, CRE, T0, 0, 0x40000, T1)
    srd(A, S3, CIM, T0, 0, 0x40000, T1)
    A(f"s_lshl_b32 s{M0B}, s{WAVE}, 12")
    A(f"s_lshr_b32 s{RCc}, s{TI}, 2\ns_mul_i32 s{RCc}, s{RCc}, {XO2*128}")
    A(f"s_and_b32 s{T0}, s{TI}, {NP2-1}\ns_mul_i32 s{T0}, s{T0}, {1024//NP2}\ns_add_u32 s{RCc}, s{RCc}, s{T0}")
    A(f"s_lshl_b32 s{RH}, s{RCc}, 6")
    A(f"s_and_b32 s{T1}, s{TJ}, 7\ns_lshl_b32 s{T1}, s{T1}, 1\ns_add_u32 s{T1}, s{T1}, s{PG}\ns_lshl_b32 s{T1}, s{T1}, 7")
    A(f"s_lshl_b32 s{T0}, s{T9}, 17\ns_add_u32 s{T0}, s{T0}, s{T1}")
    srd(A, S4, BX, T0, 0, 0x20000, T1)
    A(f"s_add_u32 s{DSK}, s{DSK}, s{T1}\ns_addc_u32 s{DSK+1}, s{DSK+1}, 0")
    A(f"s_lshl_b32 s{T1}, s{T1}, 1\ns_add_u32 s{T1}, s{T1}, 4096\ns_lshl_b32 s{T0}, s{T9}, 19\ns_add_u32 s{T0}, s{T0}, s{T1}")
    A(f"s_add_u32 s{OUT}, s{OUT}, s{T0}\ns_addc_u32 s{OUT+1}, s{OUT+1}, 0\ns_sub_u32 s{LDT}, 0x80000, s{T1}")
    A(f"s_lshl_b32 s{T0}, s{TI}, 2\ns_add_u32 s{T0}, s{T0}, s{WAVE}\ns_lshl_b32 s{T0}, s{T0}, 17\ns_lshl_b32 s{T1}, s{PG}, 16\ns_add_u32 s{T0}, s{T0}, s{T1}")
    srd(A, S0, WS, T0, WS_HT, 0x10000)

    def cdma(g, us):
        for u in us:
            if u == 0:
                A(f"s_add_u32 m0, s{M0B}, {(g % R)*16384}")
                if g % 2 == 0:
                    A(f"s_add_u32 s{SC}, s{RCc}, {(g >> 1)*128}\ns_and_b32 s{SC}, s{SC}, 0x3ff")
            vm.op(f"buffer_load_dwordx4 v{CV+u}, {r4(S2 if g % 2 == 0 else S3)}, s{SC} offen offset:{u*1024}{NTC} lds", ("c", g))
    for g in range(CPRO1):
        cdma(g, range(4))
    A(f"v_mov_b32 v15, s{NONCE}")
    a, b = uid("rs"), uid("rd")
    A(f"s_waitcnt vmcnt({4*CPRO1})\ns_mov_b64 exec, 1\ns_cmp_eq_u32 s{LOCAL}, 0\ns_cbranch_scc1 {a}")
    A(f"global_store_dword v19, v15, {sp(WS)}\ns_branch {b}")
    A.label(a)
    A(f"global_store_dword v19, v15, {sp(WS)} sc1")
    A.label(b)
    A("s_mov_b64 exec, -1")
    for g in range(CPRO1, CPRO2):
        cdma(g, range(4))

    def arrive(b):
        A(f"v_mov_b32 v14, {b+1}")
        A("s_mov_b64 exec, 1\nds_write_b32 v13, v14\ns_mov_b64 exec, -1")

    def check(b):
        l, d = uid("ck"), uid("ckd")
        A.label(l)
        A("v_min3_u32 v15, v8, v9, v10\nv_min_u32 v15, v15, v11")
        A(f"v_readfirstlane_b32 s{T0}, v15")
        A(f"s_cmp_ge_u32 s{T0}, {b+1}")
        A(f"s_cbranch_scc1 {d}")
        A("ds_read_b128 v[8:11], v12\ns_waitcnt lgkmcnt(0)")
        A(f"s_branch {l}")
        A.label(d)
    mark(A, 5)
    wait_cnt(A, 18, 8, SLP_H)
    vm.issued = []
    mark(A, 6)
    NK = 64

    def hload(s_):
        if s_ % 4 == 0:
            A(f"s_add_u32 s{SH}, s{RH}, {(s_ >> 2)*4096}\ns_and_b32 s{SH}, s{SH}, 0xffff")
        vm.op(f"buffer_load_dwordx4 {v(HR(s_),4)}, v2, {r4(S0)}, s{SH} offen offset:{(s_ & 3)*1024} sc1", ("h", s_))

    def rd2(s_, nts):
        g, ks = s_ >> 2, s_ & 3
        slot = g % R
        base = 20 if slot < 4 else 24
        for nt in nts:
            A(f"ds_read_b128 {v(CF(s_ & 1, nt),4)}, v{base+ks} offset:{(slot & 3)*16384 + nt*4096}")
    cg = CPRO2
    if cg >= 2:
        arrive(0)
    for s_ in range(HD):
        if s_ % 4 == 0 and cg < CD:
            cdma(cg, range(4))
            cg += 1
        hload(s_)
    while cg < CD:
        cdma(cg, range(4))
        cg += 1
    if CPRO2 < 2:
        vm.wait_for(("c", 1))
        arrive(0)
    A("ds_read_b128 v[8:11], v12\ns_waitcnt lgkmcnt(0)")
    check(0)
    rd2(0, range(4))
    have_c = lambda g: any(t == ("c", g) for t in vm.issued)

    def mf(s_, nt):
        c = "0" if s_ == 0 else v(ACC2(nt), 16)
        A(f"{MF} {v(ACC2(nt),16)}, {v(HR(s_),4)}, {v(CF(s_ & 1, nt),4)}, {c}")
    for s_ in range(NK):
        g, ks = s_ >> 2, s_ & 3
        nxt = s_ + 1
        more = nxt < NK
        wv = vm.wait_for(("h", s_), emit=False)
        arr = (s_ + 4) % 8 == 0 and s_ + 4 < NK
        if arr:
            gl = ((s_ + 4) >> 2) + 1
            if have_c(gl):
                wv = min(wv, vm.wait_for(("c", gl), emit=False))
        newgrp = more and nxt % 8 == 0
        fl = 1 if (s_ + 1) % 8 == 0 and more else 0
        if newgrp or not more:
            A(f"s_waitcnt vmcnt({wv}) lgkmcnt(0)")
            if newgrp:
                check(nxt >> 3)
                if nxt == 32:
                    mark(A, 7)
        else:
            A(f"s_waitcnt vmcnt({wv}) lgkmcnt(3)")
        extra = 0
        if arr:
            arrive((s_ + 4) >> 3)
            extra = 1
        full = newgrp or not more
        mf(s_, 0)
        if more:
            rd2(nxt, [0, 1])
        if not full:
            A(f"s_waitcnt lgkmcnt({4 + extra})")
        mf(s_, 1)
        if more:
            rd2(nxt, [2, 3])
        if not full:
            A(f"s_waitcnt lgkmcnt({5 + extra})")
        mf(s_, 2)
        if g + CD < NK//4:
            cdma(g + CD, [ks])
        if not full:
            A(f"s_waitcnt lgkmcnt({4 + extra})")
        mf(s_, 3)
        if s_ + HD < NK:
            hload(s_ + HD)
        if (s_ + 2) % 8 == 0 and s_ + 2 < NK:
            A("ds_read_b128 v[8:11], v12")
        if s_ == NK - 18:
            vm.op(f"global_load_dword v31, v30, {sp(DSK)}", "dsk")
        if NK - 17 <= s_ < NK - 1:
            e = s_ - (NK - 17)
            q, r = e >> 2, e & 3
            A(f"s_mov_b32 s{T0}, {q*32768 + (r >> 1)*4096}")
            vm.op(f"buffer_load_dword v{XR+e}, v28, {r4(S4)}, s{T0} offen offset:{(r & 1)*2048}", ("x", e))
    mark(A, 8)
    TG = T0
    A(f"s_mul_i32 s{TG}, s{NONCE}, 0x9e3779b1\ns_and_b32 s{TG}, s{TG}, 0xbfff0000\ns_or_b32 s{TG}, s{TG}, 0x20000000")
    A(f"s_lshl_b32 s{T4}, s{TI}, 4\ns_add_u32 s{T4}, s{T4}, s{TJ}\ns_lshl_b32 s{T4}, s{T4}, 2\ns_add_u32 s{T4}, s{T4}, s{WAVE}\ns_lshl_b32 s{T4}, s{T4}, 13")
    srd(A, S2, WS, T4, WS_XB, 0x2000)
    A(f"s_xor_b32 s{T4}, s{T4}, {8 << 15}")
    srd(A, S3, WS, T4, WS_XB, 0x2000)
    A(f"s_movk_i32 s{T4}, 0x1000")
    val = lambda n: ACC2(n & 1) + (n >> 1)
    TX, RX = 96, 180
    for gq in range(5):
        for c in range(4):
            n = 7*gq + 2*c
            lo = f"v{val(min(n, 31))}"
            hi = f"s{TG}" if c == 3 else f"v{val(min(n+1, 31))}"
            A(f"v_cvt_pk_bf16_f32 v{TX+4*gq+c}, {lo}, {hi}")
        A(f"buffer_store_dwordx4 {v(TX+4*gq,4)}, v2, {r4(S2)}, {'0' if gq < 4 else f's{T4}'} offen offset:{(gq & 3)*1024} sc1")

    def rx():
        for gq in range(5):
            A(f"buffer_load_dwordx4 {v(RX+4*gq,4)}, v2, {r4(S3)}, {'0' if gq < 4 else f's{T4}'} offen offset:{(gq & 3)*1024} sc1")
    if E_("XM", 0):
        mark(A, 3)
    A("s_waitcnt vmcnt(5)")
    if E_("XM", 0):
        mark(A, 5)
    A("v_lshlrev_b32 v8, 16, v31\nv_and_b32 v9, 0xffff0000, v31")
    YO = lambda e: 148 + 2*e
    for e in range(16):
        t = YO(e)
        A(f"v_lshlrev_b32 v{t}, 16, v{XR+e}\nv_and_b32 v{t+1}, 0xffff0000, v{XR+e}")
        A(f"v_pk_mul_f32 {v(t,2)}, {v(t,2)}, v[8:9]")
        A(f"v_cvt_pk_bf16_f32 v10, v{t}, v{t+1}")
        A(f"v_lshlrev_b32 v{t}, 16, v10\nv_and_b32 v{t+1}, 0xffff0000, v10")
        A(f"v_add_f32 v{t}, v{t}, v{ACC2(2)+e}\nv_add_f32 v{t+1}, v{t+1}, v{ACC2(3)+e}")
    A(f"s_mov_b32 s{S1}, s{OUT}\ns_mov_b32 s{S1+1}, s{OUT+1}\ns_mov_b32 s{S1+2}, s{LDT}\ns_mov_b32 s{S1+3}, 0x20000")
    xl, xd = uid("xl"), uid("xd")
    A(f"s_mov_b32 s{CNT}, 0")
    A(f"s_waitcnt vmcnt({E_('XW', 0)})")
    if E_("XM", 0):
        mark(A, 6)
    rx()
    A.label(xl)
    A("v_mov_b32 v10, 0")
    for gq in range(5):
        A(f"s_waitcnt vmcnt({4-gq})")
        A(f"v_bitop3_b32 v10, v10, v{RX+4*gq+3}, s{TG} bitop3:0xf6")
    A("v_cmp_lt_u32 vcc, 0xffff, v10")
    A(f"s_cbranch_vccz {xd}")
    A(f"s_add_u32 s{CNT}, s{CNT}, 1\ns_cmp_ge_u32 s{CNT}, {SPIN_MAX}")
    A(f"s_cbranch_scc1 {xd}")
    rx()
    A(f"s_branch {xl}")
    A.label(xd)
    if STAMP:
        A(f"s_add_u32 s74, s70, s{CNT}\ns_lshl_b32 s{CNT}, s{LOCAL}, 8\ns_add_u32 s74, s74, s{CNT}")
        mark(A, 4)
    for e in range(16):
        q, r = e >> 2, e & 3
        t = YO(e)
        for nt in range(2):
            n = 2*e + nt
            src = RX + 4*(n // 7) + (n % 7)//2
            if (n % 7) % 2 == 0:
                A(f"v_lshlrev_b32 v{10+nt}, 16, v{src}")
            else:
                A(f"v_and_b32 v{10+nt}, 0xffff0000, v{src}")
        A(f"v_pk_add_f32 {v(t,2)}, {v(t,2)}, v[10:11]")
        A(f"s_mov_b32 s{T4}, {(16*q + r)*8192}")
        A(f"buffer_store_dwordx2 {v(t,2)}, v29, {r4(S1)}, s{T4} offen")
    stamp_end(A, kidx, WAVE)


def gen_fused(A, name, kidx):
    A(f".globl {name}\n.p2align 8\n.type {name},@function")
    A.label(name)
    A("s_cmp_ge_u32 s2, 256")
    A(f"s_cbranch_scc1 L_{name}_end")
    A("s_load_dwordx16 s[4:19], s[0:1], 0")
    A("s_load_dwordx8 s[20:27], s[0:1], 64")
    A("s_load_dwordx4 s[28:31], s[0:1], 96")
    A("s_load_dwordx2 s[32:33], s[0:1], 112")
    stamp_begin(A)
    A("v_lshrrev_b32 v2, 6, v0\nv_and_b32 v1, 63, v0")
    A(f"v_readfirstlane_b32 s{WAVE}, v2")
    A(f"s_and_b32 s{T0}, s2, 7\ns_lshr_b32 s{T1}, s2, 3")
    A(f"s_lshr_b32 s{TI}, s{T0}, 1\ns_lshl_b32 s{TI}, s{TI}, 2\ns_lshr_b32 s{T2}, s{T1}, 3\ns_add_u32 s{TI}, s{TI}, s{T2}")
    A(f"s_and_b32 s{TJ}, s{T0}, 1\ns_lshl_b32 s{TJ}, s{TJ}, 3\ns_and_b32 s{T2}, s{T1}, 7\ns_add_u32 s{TJ}, s{TJ}, s{T2}")
    A(f"s_cmp_ge_u32 s{WAVE}, 4")
    A(f"s_cbranch_scc0 L_{name}_gemm")
    loader(A, name, kidx)
    A.label(f"L_{name}_gemm")
    gemm_waves(A, name, kidx)
    A.label(f"L_{name}_end")
    A("s_endpgm")
    return kdesc(name, 256)
```

```python
from asmlib import *
from common import *


def cmul_sq(A, d, a, t):
    A(f"v_mul_f32 {v(t)}, {v(a+1)}, {v(a+1)}")
    A(f"v_mul_f32 {v(t+1)}, {v(a)}, {v(a+1)}")
    A(f"v_fma_f32 {v(d)}, {v(a)}, {v(a)}, -{v(t)}")
    A(f"v_add_f32 {v(d+1)}, {v(t+1)}, {v(t+1)}")


def horner(A, dr, di, L, pr, pi, er, ei, t):
    A(f"v_fma_f32 {v(t)}, {v(L)}, {v(pr)}, {v(er)}")
    A(f"v_fma_f32 {v(t+1)}, {v(L)}, {v(pi)}, {v(ei)}")
    A(f"v_fma_f32 {v(t)}, -{v(L+1)}, {v(pi)}, {v(t)}")
    A(f"v_fma_f32 {v(di)}, {v(L+1)}, {v(pr)}, {v(t+1)}")
    A(f"v_mov_b32 {v(dr)}, {v(t)}")


ROT = int(os.environ.get('ROT', '1'))
PRO = int(os.environ.get('PRO', '2'))
TOUCH = int(os.environ.get('TOUCH', '0'))
XO = int(os.environ.get('XO', '2'))
NP = int(os.environ.get('NP', '1'))
XO2 = int(os.environ.get('XO2', '2'))
NP2 = int(os.environ.get('NP2', '1'))
HACK16 = int(os.environ.get('HACK16', '0'))
RI = int(os.environ.get('RI', '0'))
RJ = int(os.environ.get('RJ', '0'))
G1_NS = int(os.environ.get('G1_NS', '4'))


def gen_g1(A, name="g1_kernel", kidx=0):
    NS = G1_NS
    A(f".globl {name}\n.p2align 8\n.type {name},@function")
    A.label(name)
    A("s_cmp_ge_u32 s2, 256")
    A(f"s_cbranch_scc1 L_{name}_end")
    stamp_begin(A)
    A("s_load_dwordx2 s[4:5], s[0:1], 24")
    A("s_load_dwordx4 s[8:11], s[0:1], 32")
    A("s_load_dwordx4 s[12:15], s[0:1], 48")
    A("s_load_dwordx2 s[6:7], s[0:1], 80")
    A("s_load_dwordx4 s[16:19], s[0:1], 104")
    A("v_lshrrev_b32 v2, 6, v0")
    A("v_and_b32 v1, 63, v0")
    A("v_readfirstlane_b32 s20, v2")
    A("s_and_b32 s44, s2, 7\ns_lshr_b32 s45, s2, 3")
    A("s_lshr_b32 s21, s44, 1\ns_lshl_b32 s21, s21, 2\ns_lshr_b32 s46, s45, 3\ns_add_u32 s21, s21, s46")
    A("s_and_b32 s22, s44, 1\ns_lshl_b32 s22, s22, 3\ns_and_b32 s46, s45, 7\ns_add_u32 s22, s22, s46")
    A("s_waitcnt lgkmcnt(0)")
    A("s_cmp_ge_u32 s20, 4")
    A(f"s_cbranch_scc0 L_{name}_compute")
    A("s_sub_u32 s23, s20, 4")
    A("s_lshl_b32 s44, s21, 18\ns_add_u32 s24, s4, s44\ns_addc_u32 s25, s5, 0\ns_mov_b32 s26, 0x40000\ns_mov_b32 s27, 0x20000")
    A("s_bitcmp1_b32 s23, 0\ns_cselect_b32 s28, s14, s12\ns_cselect_b32 s29, s15, s13")
    A("s_lshl_b32 s44, s22, 17\ns_add_u32 s28, s28, s44\ns_addc_u32 s29, s29, 0\ns_mov_b32 s30, 0x20000\ns_mov_b32 s31, 0x20000")
    A("v_lshrrev_b32 v2, 5, v1")
    A("v_bfe_u32 v3, v1, 3, 2")
    A("v_and_b32 v4, 1, v3\nv_lshrrev_b32 v5, 1, v3")
    A("v_lshlrev_b32 v6, 5, v2\nv_lshl_add_u32 v6, v4, 4, v6\nv_add_u32 v6, v6, v5")
    A("s_lshr_b32 s44, s23, 1\ns_lshl_b32 s45, s44, 6\ns_and_b32 s46, s23, 1\ns_lshl_b32 s46, s46, 3\ns_add_u32 s45, s45, s46")
    A("v_add_u32 v6, s45, v6\nv_lshlrev_b32 v6, 11, v6")
    A("s_lshl_b32 s45, s44, 5")
    A("v_lshl_add_u32 v7, v2, 3, v3\nv_add_u32 v7, s45, v7\nv_lshlrev_b32 v7, 11, v7")
    A("v_and_b32 v4, 7, v1\nv_lshrrev_b32 v5, 4, v1\nv_xor_b32 v4, v4, v5\nv_lshlrev_b32 v4, 4, v4")
    A("v_xor_b32 v5, 64, v4")
    for u in range(4):
        ch = 4 if u % 2 == 0 else 5
        A(f"v_add_u32 v{8+u}, v6, v{ch}")
        if u:
            A(f"v_add_u32 v{8+u}, {u*4096 - u*1024}, v{8+u}")
        A(f"v_add_u32 v{12+u}, v7, v{ch}")
        if u:
            A(f"v_add_u32 v{12+u}, {(16*(u>>1) + 4*(u&1))*2048 - u*1024}, v{12+u}")
    A("s_lshl_b32 s47, s23, 12")
    A(f"s_and_b32 s49, s2, 7\ns_mul_i32 s49, s49, {XO*128}")
    A(f"s_add_u32 s44, s21, s22\ns_and_b32 s44, s44, {NP-1}\ns_mul_i32 s44, s44, {2048//NP}\ns_add_u32 s49, s49, s44")
    A(f"s_mul_i32 s44, s21, {RI*128}\ns_add_u32 s49, s49, s44\ns_mul_i32 s44, s22, {RJ*128}\ns_add_u32 s49, s49, s44")
    mark(A, 6)
    A("s_or_b32 s44, s2, s23\ns_cmp_lg_u32 s44, 0")
    A(f"s_cbranch_scc1 L_{name}_nononce")
    A(f"s_load_dword s50, s[18:19], {WS_NONCE}")
    A("v_mov_b32 v16, 0\ns_waitcnt lgkmcnt(0)")
    A("s_add_u32 s50, s50, 1\ns_cmp_eq_u32 s50, 0\ns_cselect_b32 s50, 1, s50")
    A("v_mov_b32 v17, s50")
    A("global_store_dword v16, v17, s[16:17] sc0 sc1")
    A(f"global_store_dword v16, v17, s[18:19] offset:{WS_NONCE}")
    A.label(f"L_{name}_nononce")

    def issue(k):
        slot = k % NS
        A(f"s_add_u32 m0, s47, {slot*32768}")
        if ROT:
            A(f"s_add_u32 s48, s49, {k*128}\ns_and_b32 s48, s48, 0x7ff")
        else:
            A(f"s_mov_b32 s48, {k*128}")
        for u in range(4):
            A(f"buffer_load_dwordx4 v{8+u}, s[24:27], s48 offen offset:{u*1024} lds")
        A(f"s_add_u32 m0, s47, {slot*32768 + 16384}")
        for u in range(4):
            A(f"buffer_load_dwordx4 v{12+u}, s[28:31], s48 offen offset:{u*1024} lds")
    issued = 0
    for k in range(min(PRO, NS-1)):
        issue(k); issued += 1
    for k in range(16):
        A(f"s_waitcnt vmcnt({8*(issued - 1 - k)})")
        A("s_barrier")
        if k % 4 == 0:
            mark(A, 1 + k//4)
        while issued < min(16, k + NS):
            issue(issued); issued += 1
    A("s_barrier")
    stamp_end(A, kidx, 20)
    A("s_endpgm")
    A.label(f"L_{name}_compute")
    ACC = lambda T, c: 64 + (T*2 + c)*16
    FR = lambda X, f: 32 + X*16 + f*4
    NSET = (NS + 1)//2
    AD = lambda st, op, ks: 128 + st*8 + op*4 + ks
    LAM, KC, L16, L128, L256 = 24, 26, 28, 30, 2
    A("s_lshr_b32 s23, s20, 1\ns_and_b32 s44, s20, 1")
    A("s_mov_b32 s51, s44")
    A("v_and_b32 v6, 31, v1\nv_lshrrev_b32 v5, 5, v1")
    A("v_and_b32 v4, 0x13, v6")
    A("v_bfe_u32 v7, v6, 2, 1\nv_lshl_or_b32 v4, v7, 3, v4")
    A("v_bfe_u32 v7, v6, 3, 1\nv_lshl_or_b32 v4, v7, 2, v4")
    A("s_lshl_b32 s45, s22, 6\ns_lshl_b32 s46, s44, 5\ns_add_u32 s45, s45, s46")
    A("v_add_u32 v4, s45, v4")
    A("v_lshlrev_b32 v7, 1, v4")
    A("global_load_ushort v8, v7, s[8:9]\nglobal_load_ushort v9, v7, s[10:11]\nglobal_load_ushort v10, v7, s[6:7]")
    table_base(A, 52, name)
    A("v_lshlrev_b32 v11, 4, v1")
    A(f"global_load_dwordx4 v[248:251], v11, s[52:53] offset:{TBL_PERM}")
    A(f"global_load_dwordx4 v[252:255], v11, s[52:53] offset:{TBL_PERM+1024}")
    if TOUCH == 1:
        A("s_and_b32 s56, s2, 7\ns_lshr_b32 s57, s2, 3\ns_lshl_b32 s57, s57, 4\ns_lshl_b32 s58, s20, 2\ns_add_u32 s57, s57, s58")
        A("v_lshrrev_b32 v12, 4, v1\nv_add_u32 v12, s57, v12\nv_lshlrev_b32 v12, 11, v12\nv_and_b32 v13, 15, v1\nv_lshl_add_u32 v12, v13, 7, v12")
        A("s_lshr_b32 s58, s56, 1\ns_lshl_b32 s58, s58, 20\nv_add_u32 v13, s58, v12")
        A("global_load_dword v244, v13, s[4:5]")
        A("s_and_b32 s58, s56, 1\ns_lshl_b32 s58, s58, 20\nv_add_u32 v13, s58, v12")
        A("global_load_dword v245, v13, s[12:13]")
        A("global_load_dword v246, v13, s[14:15]")
    if TOUCH == 2:
        A("s_and_b32 s56, s2, 7\ns_lshr_b32 s57, s2, 3\ns_lshl_b32 s57, s57, 2\ns_add_u32 s57, s57, s20")
        A("s_and_b32 s58, s57, 7\ns_lshl_b32 s58, s58, 17\ns_lshr_b32 s57, s57, 3\ns_lshl_b32 s59, s56, 1\ns_add_u32 s57, s57, s59")
        A("s_and_b32 s57, s57, 15\ns_lshl_b32 s57, s57, 7\ns_add_u32 s57, s57, s58")
        A("v_lshlrev_b32 v12, 11, v1\nv_add_u32 v12, s57, v12")
        A("s_lshr_b32 s58, s56, 1\ns_lshl_b32 s58, s58, 20\nv_add_u32 v13, s58, v12")
        A("global_load_dword v244, v13, s[4:5]")
        A("s_and_b32 s58, s56, 1\ns_lshl_b32 s58, s58, 20\nv_add_u32 v13, s58, v12")
        A("global_load_dword v245, v13, s[12:13]")
        A("global_load_dword v246, v13, s[14:15]")
    A("v_bfe_u32 v7, v6, 1, 3\nv_xor_b32 v7, v7, v5\nv_lshlrev_b32 v7, 4, v7\nv_lshl_add_u32 v7, v6, 7, v7")
    A("s_lshl_b32 s45, s23, 13\ns_lshl_b32 s46, s44, 13\ns_add_u32 s46, s46, 16384")
    for ks in range(4):
        A(f"v_xor_b32 v12, {ks << 5}, v7")
        A(f"v_add_u32 v{AD(0,0,ks)}, s45, v12\nv_add_u32 v{AD(0,1,ks)}, s46, v12")
        for st in range(1, NSET):
            A(f"v_add_u32 v{AD(st,0,ks)}, {st*65536}, v{AD(0,0,ks)}")
            A(f"v_add_u32 v{AD(st,1,ks)}, {st*65536}, v{AD(0,1,ks)}")
    for r in range(64, 128, 2):
        A(f"v_mov_b64 v[{r}:{r+1}], 0")
    A(f"s_add_u32 s32, s18, {WS_EG}\ns_addc_u32 s33, s19, 0\ns_mov_b32 s34, 0x40000\ns_mov_b32 s35, 0x20000")
    A(f"s_add_u32 s36, s18, {WS_HT}\ns_addc_u32 s37, s19, 0\ns_mov_b32 s38, 0x800000\ns_mov_b32 s39, 0x20000")
    A(f"s_waitcnt vmcnt({5 if TOUCH else 2})")
    A("v_lshlrev_b32 v8, 16, v8\nv_lshlrev_b32 v9, 16, v9\nv_lshlrev_b32 v10, 16, v10")
    A("v_mul_f32 v10, 0x3fb8aa3b, v10\nv_exp_f32 v10, v10")
    A("v_cvt_pk_bf16_f32 v10, v10, v10\nv_lshlrev_b32 v10, 16, v10")
    A("v_mul_f32 v12, v10, v8\nv_mul_f32 v13, v10, v9")
    A("v_mul_f32 v12, 0x3fb8aa3b, v12\nv_exp_f32 v12, v12")
    A("v_mul_f32 v13, 0.15915494, v13\nv_rndne_f32 v14, v13\nv_sub_f32 v13, v13, v14")
    A("v_cos_f32 v14, v13\nv_sin_f32 v15, v13")
    A(f"v_mul_f32 v{LAM}, v12, v14\nv_mul_f32 v{LAM+1}, v12, v15")
    A(f"v_add_f32 v12, -1.0, v{LAM}")
    A("v_mul_f32 v13, v8, v8\nv_fma_f32 v13, v9, v9, v13\nv_rcp_f32 v13, v13")
    A("v_add_f32 v13, v13, v13")
    A(f"v_mul_f32 v14, v12, v8\nv_fma_f32 v14, v{LAM+1}, v9, v14\nv_mul_f32 v{KC}, v14, v13")
    A(f"v_mul_f32 v14, v{LAM+1}, v8\nv_fma_f32 v14, -v12, v9, v14\nv_mul_f32 v{KC+1}, v14, v13")
    cmul_sq(A, L16, LAM, 12)
    for _ in range(3):
        cmul_sq(A, L16, L16, 12)
    cmul_sq(A, L128, L16, 12)
    for _ in range(2):
        cmul_sq(A, L128, L128, 12)
    cmul_sq(A, L256, L128, 12)

    def reads(k, ks, which):
        slot = k % NS
        st, off = slot >> 1, (slot & 1)*32768
        X = ks & 1
        for f in which:
            op = 0 if f in (0, 3) else 1
            hi = 4096 if f in (2, 3) else 0
            A(f"ds_read_b128 {v(FR(X, f), 4)}, v{AD(st, op, ks)} offset:{off + hi}")

    def mfma(T, c, X):
        a = FR(X, 0 if T == 0 else 3)
        b = FR(X, 1 if c == 0 else 2)
        if HACK16:
            for z in range(2):
                d = ACC(T, c) + 8*X + 4*z
                A(f"v_mfma_f32_16x16x32_bf16 {v(d,4)}, {v(a,4)}, {v(b,4)}, {v(d,4)}")
        else:
            A(f"v_mfma_f32_32x32x16_bf16 {v(ACC(T,c),16)}, {v(a,4)}, {v(b,4)}, {v(ACC(T,c),16)}")
    A("s_barrier")
    reads(0, 0, [0, 1, 2, 3])
    for k in range(16):
        for ks in range(4):
            X = ks & 1
            nk, nks = (k, ks+1) if ks < 3 else (k+1, 0)
            have = nk < 16
            if ks == 3:
                A("s_waitcnt lgkmcnt(0)\ns_barrier")
            else:
                A("s_waitcnt lgkmcnt(2)")
            if k == 15 and ks == 0:
                A("v_mov_b32 v12, 0")
                A("global_load_dword v13, v12, s[16:17] sc1")
            mfma(0, 0, X)
            if have:
                reads(nk, nks, [0, 1])
            if ks != 3:
                A("s_waitcnt lgkmcnt(3)")
            mfma(0, 1, X)
            if have:
                reads(nk, nks, [2, 3])
            if ks != 3:
                A("s_waitcnt lgkmcnt(4)")
            mfma(1, 0, X)
            mfma(1, 1, X)
    mark(A, 1)
    U = lambda c, idx: ACC(idx >> 3, c) + 2*(idx & 7)
    bc_a = "op_sel_hi:[0,1,1]"
    bc_b = "op_sel:[1,0,0]"
    neg0 = "neg_lo:[1,0,0] neg_hi:[1,0,0]"
    E = 32
    TT = 40

    def scan_step(dr, di, pr, pi, ur, ui):
        A(f"v_pk_fma_f32 {v(TT,2)}, {v(LAM,2)}, {v(pr,2)}, {v(ur,2)} {bc_a}")
        A(f"v_pk_fma_f32 {v(TT+2,2)}, {v(LAM,2)}, {v(pi,2)}, {v(ui,2)} {bc_a}")
        A(f"v_pk_fma_f32 {v(dr,2)}, {v(LAM,2)}, {v(pi,2)}, {v(TT,2)} {bc_b} {neg0}")
        A(f"v_pk_fma_f32 {v(di,2)}, {v(LAM,2)}, {v(pr,2)}, {v(TT+2,2)} {bc_b}")
    cur = (U(0, 0), U(1, 0))
    for idx in range(1, 16):
        d = E + 4*(idx & 1 ^ 1)
        scan_step(d, d+2, cur[0], cur[1], U(0, idx), U(1, idx))
        cur = (d, d+2)
    assert cur[0] == E
    A("s_lshl_b32 s45, s51, 11\ns_lshl_b32 s46, s23, 5")
    A("v_lshl_add_u32 v14, v6, 6, s45")
    A("v_lshl_add_u32 v15, v5, 4, v14\nv_add_u32 v15, s46, v15")
    A(f"ds_write_b128 v15, {v(E,4)}")
    A("s_sub_u32 s45, s21, 1\ns_lshl_b32 s45, s45, 14")
    A("v_lshlrev_b32 v16, 4, v4\nv_lshlrev_b32 v17, 14, v5\nv_sub_u32 v17, v16, v17")
    A(f"v_add_u32 v128, s45, v17")
    for u in range(1, 8):
        A(f"v_subrev_u32 v{128+u}, {u*32768}, v128")
    A("s_lshl_b32 s45, s21, 14\nv_add_u32 v16, s45, v16")
    A("v_lshlrev_b32 v17, 30, v5\nv_or_b32 v16, v16, v17")
    A("s_waitcnt lgkmcnt(0)\ns_barrier")
    mark(A, 2)
    SG = 144
    for u in range(4):
        A(f"ds_read_b128 {v(SG+4*u,4)}, v14 offset:{u*16}")
    A.label(f"L_{name}_nonce")
    A("s_waitcnt vmcnt(0)")
    A("v_readfirstlane_b32 s50, v13")
    A("s_cmp_lg_u32 s50, 0")
    A(f"s_cbranch_scc1 L_{name}_gotnonce")
    A("global_load_dword v13, v12, s[16:17] sc1")
    A(f"s_branch L_{name}_nonce")
    A.label(f"L_{name}_gotnonce")
    A("s_waitcnt lgkmcnt(0)")
    seg = lambda sidx: (SG + 4*(sidx >> 1) + (sidx & 1), SG + 4*(sidx >> 1) + 2 + (sidx & 1))
    P = 44
    A(f"v_mov_b32 v{P}, v{seg(0)[0]}\nv_mov_b32 v{P+1}, v{seg(0)[1]}")
    for sidx in range(1, 8):
        horner(A, P, P+1, L16, P, P+1, seg(sidx)[0], seg(sidx)[1], TT)
    A(f"v_mov_b32 v{P+2}, s50\nv_mov_b32 v{P+3}, s50")
    A("s_cmp_lg_u32 s23, 0")
    A(f"s_cbranch_scc1 L_{name}_nopub")
    A(f"buffer_store_dwordx4 {v(P,4)}, v16, s[32:35], 0 offen sc0 sc1")
    A.label(f"L_{name}_nopub")
    mark(A, 3)
    LB = 160
    A("v_mov_b32 v17, 0x40000000")
    for u in range(8):
        A(f"v_cmp_le_i32 vcc, 0, v{128+u}")
        A(f"v_cndmask_b32 v{136+u}, 0, v{P+2}, vcc")
        A(f"v_cndmask_b32 v{128+u}, v17, v{128+u}, vcc")
    A("s_mov_b32 s46, 0")
    A.label(f"L_{name}_poll")
    for u in range(8):
        A(f"buffer_load_dwordx4 {v(LB+4*u,4)}, v{128+u}, s[32:35], 0 offen sc1")
    A("s_mov_b64 s[54:55], 0")
    for u in range(8):
        A(f"s_waitcnt vmcnt({7-u})")
        A(f"v_cmp_ne_u32 vcc, v{LB+4*u+2}, v{136+u}")
        A("s_or_b64 s[54:55], s[54:55], vcc")
        A(f"v_cmp_ne_u32 vcc, v{LB+4*u+3}, v{136+u}")
        A("s_or_b64 s[54:55], s[54:55], vcc")
    A("s_add_u32 s46, s46, 1")
    A("s_cmp_eq_u64 s[54:55], 0")
    A(f"s_cbranch_scc1 L_{name}_polled")
    A(f"s_cmp_lt_u32 s46, {SPIN_MAX}")
    A(f"s_cbranch_scc1 L_{name}_poll")
    A.label(f"L_{name}_polled")
    mark(A, 4)
    if STAMP:
        A("s_mov_b32 s86, s46\ns_add_u32 s86, s86, s70")
    H = LB + 28
    for u in range(6, -1, -1):
        horner(A, H, H+1, L256, H, H+1, LB+4*u, LB+4*u+1, TT)
    A(f"v_mov_b32 v48, v{H}\nv_mov_b32 v49, v{H+1}")
    A(f"v_permlane32_swap_b32 v{H}, v48\nv_permlane32_swap_b32 v{H+1}, v49")
    PS = 192
    horner(A, PS, PS+1, L128, 48, 49, H, H+1, TT)
    for sidx in range(1, 8):
        pr = PS + 2*(sidx-1)
        horner(A, pr+2, pr+3, L16, pr, pr+1, seg(sidx-1)[0], seg(sidx-1)[1], TT)
    A("s_cmp_eq_u32 s23, 0")
    A(f"s_cbranch_scc1 L_{name}_wt0")
    for r in range(8):
        A(f"v_mov_b32 v{PS+r}, v{PS+8+r}")
    A.label(f"L_{name}_wt0")
    A("v_cmp_eq_u32 vcc, 1, v5")
    G = 48
    A(f"v_cndmask_b32 v{G}, v{PS}, v{PS+4}, vcc")
    A(f"v_cndmask_b32 v{G+1}, v{PS+2}, v{PS+6}, vcc")
    A(f"v_cndmask_b32 v{G+2}, v{PS+1}, v{PS+5}, vcc")
    A(f"v_cndmask_b32 v{G+3}, v{PS+3}, v{PS+7}, vcc")
    PK = lambda c, idx: 128 + 16*c + idx
    cur = (G, G+2)
    O = 52
    for idx in range(16):
        d = (U(0, idx), U(1, idx))
        scan_step(d[0], d[1], cur[0], cur[1], d[0], d[1])
        cur = d
        A(f"v_pk_mul_f32 {v(O,2)}, {v(KC,2)}, {v(d[0],2)} op_sel_hi:[0,1]")
        A(f"v_pk_mul_f32 {v(O+2,2)}, {v(KC,2)}, {v(d[1],2)} op_sel_hi:[0,1] neg_lo:[1,0] neg_hi:[1,0]")
        A(f"v_pk_fma_f32 {v(O,2)}, {v(KC,2)}, {v(d[1],2)}, {v(O,2)} {bc_b} {neg0}")
        A(f"v_pk_fma_f32 {v(O+2,2)}, {v(KC,2)}, {v(d[0],2)}, {v(O+2,2)} {bc_b} {neg0}")
        A(f"v_cvt_pk_bf16_f32 v{PK(0,idx)}, v{O}, v{O+1}")
        A(f"v_cvt_pk_bf16_f32 v{PK(1,idx)}, v{O+2}, v{O+3}")
    mark(A, 5)
    D = lambda c, X: 160 + (c*2 + X)*16
    for c in range(2):
        for X in range(2):
            A(f"v_mfma_f32_32x32x16_bf16 {v(D(c,X),16)}, {v(PK(c,8*X),4)}, v[248:251], 0")
            A(f"v_mfma_f32_32x32x16_bf16 {v(D(c,X),16)}, {v(PK(c,8*X+4),4)}, v[252:255], {v(D(c,X),16)}")
    A("s_lshl_b32 s45, s21, 1\ns_add_u32 s45, s45, s23\ns_lshl_b32 s45, s45, 18")
    A("s_lshl_b32 s46, s22, 13\ns_add_u32 s45, s45, s46\ns_lshl_b32 s46, s51, 11\ns_add_u32 s45, s45, s46")
    for c in range(2):
        for X in range(2):
            A(f"s_add_u32 s46, s45, {X*131072 + c*4096}")
            q = 64 + (c*2 + X)*8
            for jj in range(8):
                A(f"v_cvt_pk_bf16_f32 v{q+jj}, v{D(c,X)+2*jj}, v{D(c,X)+2*jj+1}")
            A(f"buffer_store_dwordx4 {v(q,4)}, v11, s[36:39], s46 offen")
            A(f"buffer_store_dwordx4 {v(q+4,4)}, v11, s[36:39], s46 offen offset:1024")
    stamp_end(A, kidx, 20)
    A.label(f"L_{name}_end")
    A("s_endpgm")
    return kdesc(name, 256)


def gen_g2(A, name="g2_kernel", kidx=1):
    HD = 32
    CD = 10
    R = 16
    BG = 2
    A(f".globl {name}\n.p2align 8\n.type {name},@function")
    A.label(name)
    A("s_cmp_ge_u32 s2, 256")
    A(f"s_cbranch_scc1 L_{name}_end")
    stamp_begin(A)
    A("s_load_dwordx2 s[4:5], s[0:1], 24")
    A("s_load_dwordx4 s[8:11], s[0:1], 64")
    A("s_load_dwordx4 s[12:15], s[0:1], 88")
    A("s_load_dwordx2 s[18:19], s[0:1], 112")
    A("v_lshrrev_b32 v2, 6, v0")
    A("v_and_b32 v1, 63, v0")
    A("v_readfirstlane_b32 s20, v2")
    A("s_and_b32 s44, s2, 7\ns_lshr_b32 s45, s2, 3")
    A("s_lshr_b32 s21, s44, 1\ns_lshl_b32 s21, s21, 2\ns_lshr_b32 s46, s45, 3\ns_add_u32 s21, s21, s46")
    A("s_and_b32 s22, s44, 1\ns_lshl_b32 s22, s22, 3\ns_and_b32 s46, s45, 7\ns_add_u32 s22, s22, s46")
    A("v_lshlrev_b32 v2, 4, v1")
    A("v_lshrrev_b32 v3, 3, v1")
    A("s_and_b32 s44, s20, 1\ns_lshl_b32 s44, s44, 5\ns_lshr_b32 s45, s20, 1\ns_add_u32 s44, s44, s45")
    A("v_lshl_add_u32 v3, v3, 1, s44\nv_lshlrev_b32 v3, 11, v3")
    A("v_and_b32 v12, 7, v1\nv_lshrrev_b32 v13, 4, v1\nv_xor_b32 v12, v12, v13\nv_lshlrev_b32 v12, 4, v12")
    A("v_xor_b32 v13, 64, v12")
    A("v_add_u32 v14, v3, v12")
    A(f"v_add_u32 v15, v3, v13\nv_add_u32 v15, {16*2048 - 1024}, v15")
    A("s_waitcnt lgkmcnt(0)")
    A("s_lshl_b32 s44, s21, 2\ns_add_u32 s44, s44, s20\ns_lshl_b32 s44, s44, 17")
    A(f"s_add_u32 s44, s44, {WS_HT}")
    A("s_add_u32 s24, s18, s44\ns_addc_u32 s25, s19, 0\ns_mov_b32 s26, 0x20000\ns_mov_b32 s27, 0x20000")
    A("s_lshl_b32 s44, s22, 17")
    A("s_add_u32 s28, s8, s44\ns_addc_u32 s29, s9, 0\ns_mov_b32 s30, 0x20000\ns_mov_b32 s31, 0x20000")
    A("s_add_u32 s32, s10, s44\ns_addc_u32 s33, s11, 0\ns_mov_b32 s34, 0x20000\ns_mov_b32 s35, 0x20000")
    A("s_lshl_b32 s47, s20, 11")
    A(f"s_and_b32 s57, s2, 7\ns_mul_i32 s57, s57, {XO2*128}")
    A(f"s_add_u32 s44, s21, s22\ns_and_b32 s44, s44, {NP2-1}\ns_mul_i32 s44, s44, {2048//NP2}\ns_add_u32 s57, s57, s44")
    A("s_lshl_b32 s56, s57, 6")
    mark(A, 7)
    vm = VmCounter(A)
    HR = lambda s_: 64 + 4*(s_ % HD)

    def hload(s_):
        if s_ % 4 == 0:
            if ROT:
                A(f"s_add_u32 s48, s56, {(s_ >> 2)*4096}\ns_and_b32 s48, s48, 0x1ffff")
            else:
                A(f"s_mov_b32 s48, {(s_ >> 2)*4096}")
        vm.op(f"buffer_load_dwordx4 {v(HR(s_),4)}, v2, s[24:27], s48 offen offset:{(s_ & 3)*1024}", ("h", s_))

    def cdma(g, u):
        srd = "s[28:31]" if g % 2 == 0 else "s[32:35]"
        if u == 0:
            A(f"s_add_u32 m0, s47, {(g % R)*8192}")
            if ROT:
                A(f"s_add_u32 s49, s57, {(g >> 1)*128}\ns_and_b32 s49, s49, 0x7ff")
            else:
                A(f"s_mov_b32 s49, {(g >> 1)*128}")
        vm.op(f"buffer_load_dwordx4 v{14+u}, {srd}, s49 offen offset:{u*1024} lds", ("c", g))
    for g in range(CD):
        cdma(g, 0)
        cdma(g, 1)
        if g < HD//4:
            for ks in range(4):
                hload(4*g + ks)
    A("v_and_b32 v16, 31, v1\nv_lshrrev_b32 v17, 5, v1")
    A("v_bfe_u32 v18, v16, 1, 3\nv_xor_b32 v18, v18, v17\nv_lshlrev_b32 v18, 4, v18\nv_lshl_add_u32 v18, v16, 7, v18")
    for ks in range(4):
        A(f"v_xor_b32 v{4+ks}, {ks << 5}, v18")
        A(f"v_add_u32 v{8+ks}, 0x10000, v{4+ks}")
    A("s_and_b32 s44, s20, 1\ns_lshl_b32 s44, s44, 3")
    A("v_lshl_add_u32 v17, v17, 2, s44")
    A("v_lshlrev_b32 v208, 11, v17\nv_lshl_add_u32 v208, v16, 2, v208")
    A("v_lshlrev_b32 v209, 13, v17\nv_lshl_add_u32 v209, v16, 3, v209")
    A("v_lshlrev_b32 v210, 2, v16")
    A("s_lshl_b32 s44, s21, 1\ns_lshr_b32 s45, s20, 1\ns_add_u32 s44, s44, s45")
    A("s_lshl_b32 s45, s44, 17\ns_lshl_b32 s46, s22, 7\ns_add_u32 s45, s45, s46")
    A("s_add_u32 s36, s4, s45\ns_addc_u32 s37, s5, 0\ns_sub_u32 s38, 0x20000, s46\ns_mov_b32 s39, 0x20000")
    A("s_add_u32 s12, s12, s46\ns_addc_u32 s13, s13, 0")
    A("s_lshl_b32 s45, s44, 19\ns_lshl_b32 s46, s22, 8\ns_add_u32 s46, s46, 4096\ns_add_u32 s45, s45, s46")
    A("s_add_u32 s40, s14, s45\ns_addc_u32 s41, s15, 0\ns_sub_u32 s42, 0x80000, s46\ns_mov_b32 s43, 0x20000")
    ACC = lambda nt: 16 + 16*nt
    CF = lambda X, nt: 48 + 8*X + 4*nt

    def reads(s_):
        g, ks = s_ >> 2, s_ & 3
        slot = g % R
        base = 4 if slot < 8 else 8
        for nt in range(2):
            A(f"ds_read_b128 {v(CF(s_ & 1, nt),4)}, v{base+ks} offset:{(slot & 7)*8192 + nt*4096}")
    mark(A, 1)
    vm.wait_for(("c", BG-1))
    A("s_barrier")
    mark(A, 2)
    reads(0)
    for s_ in range(128):
        g, ks = s_ >> 2, s_ & 3
        nxt = s_ + 1
        newgrp = nxt < 128 and nxt % (4*BG) == 0
        wh = vm.wait_for(("h", s_), emit=False)
        if newgrp:
            wc = vm.wait_for(("c", (nxt >> 2) + BG - 1), emit=False)
            A(f"s_waitcnt vmcnt({min(wh, wc)}) lgkmcnt(0)\ns_barrier")
            if nxt % 32 == 0:
                mark(A, 2 + nxt//32)
            reads(nxt)
        else:
            if nxt < 128:
                reads(nxt)
                A(f"s_waitcnt vmcnt({wh}) lgkmcnt(2)")
            else:
                A(f"s_waitcnt vmcnt({wh}) lgkmcnt(0)")
        for nt in range(2):
            c = "0" if s_ == 0 else v(ACC(nt), 16)
            if HACK16:
                for z in range(2):
                    a = ACC(nt) + 8*(s_ & 1) + 4*z
                    A(f"v_mfma_f32_16x16x32_bf16 {v(a,4)}, {v(HR(s_),4)}, {v(CF(s_ & 1, nt),4)}, {v(a,4)}")
            else:
                A(f"v_mfma_f32_32x32x16_bf16 {v(ACC(nt),16)}, {v(HR(s_),4)}, {v(CF(s_ & 1, nt),4)}, {c}")
        if s_ + HD < 128:
            hload(s_ + HD)
        if ks in (0, 2) and g + CD < 32:
            cdma(g + CD, ks >> 1)
        if s_ == 128 - HD:
            vm.op("global_load_dword v211, v210, s[12:13]", "dsk")
        if 128 - HD <= s_ < 128 - HD + 16:
            e = s_ - (128 - HD)
            q, r = e >> 2, e & 3
            A(f"s_mov_b32 s50, {q*32768 + (r >> 1)*4096}")
            vm.op(f"buffer_load_dword v{192+e}, v208, s[36:39], s50 offen offset:{(r & 1)*2048}", ("x", e))
    mark(A, 6)
    A("s_waitcnt vmcnt(0)")
    A("v_lshlrev_b32 v212, 16, v211\nv_and_b32 v213, 0xffff0000, v211")
    for e in range(16):
        q, r = e >> 2, e & 3
        t = 64 + 4*e
        A(f"v_lshlrev_b32 v{t}, 16, v{192+e}\nv_and_b32 v{t+1}, 0xffff0000, v{192+e}")
        A(f"v_pk_mul_f32 {v(t,2)}, {v(t,2)}, v[212:213]")
        A(f"v_cvt_pk_bf16_f32 v{t+2}, v{t}, v{t+1}")
        A(f"v_lshlrev_b32 v{t}, 16, v{t+2}\nv_and_b32 v{t+1}, 0xffff0000, v{t+2}")
        A(f"v_add_f32 v{t}, v{t}, v{ACC(0)+e}\nv_add_f32 v{t+1}, v{t+1}, v{ACC(1)+e}")
        A(f"s_mov_b32 s50, {(16*q + r)*8192}")
        A(f"buffer_store_dwordx2 {v(t,2)}, v209, s[40:43], s50 offen")
    stamp_end(A, kidx, 20)
    A.label(f"L_{name}_end")
    A("s_endpgm")
    return kdesc(name, 256)
```

```python
import sys
from asmlib import *
from common import *
import partb

HEADER = open("concat_heads__spectral_gfnet__ssm_conv_s5__prompt.s.ref").read().split("; Override launch")[0]

KNAME = "concat_heads__spectral_gfnet__ssm_conv_s5__prompt_kernel"
def build(parts):
    launches, bodies, descs = [], [], []
    for kidx, (name, gen, grid, block, lds) in enumerate(parts):
        A = Asm()
        d = gen(A, name, kidx)
        lines, npad = pad(A.lines)
        print(f"; {name}: {len(lines)} lines, {npad} pad states", file=sys.stderr)
        launches.append(f"; @launch {'' if name == KNAME else 'kernel=' + name + ' '}grid=({grid},1,1) block=({block},1,1) lds={lds}")
        bodies.append("\n".join(lines)); descs.append(d)
    out = HEADER + "\n".join(launches) + '\n.amdgcn_target "amdgcn-amd-amdhsa--gfx950"\n.text\n'
    out += "\n".join(bodies) + "\n" + (tables() if "tables" in "".join(bodies) else "") + "\n" + "\n".join(descs) + "\n"
    return out

if __name__ == "__main__":
    which = sys.argv[1]
    P = {
        "g1": ("g1_kernel", partb.gen_g1, 256, 512, partb.G1_NS*32768),
        "g2": ("g2_kernel", partb.gen_g2, 256, 256, 131072),
    }
    import fused
    P["fused"] = (KNAME, fused.gen_fused, 256, 512, 163840)
    P["fusedl"] = ("fused_kernel", fused.gen_fused, 256, 512, 163840)
    def gen_empty(A, name, kidx):
        A(f".globl {name}\n.p2align 8\n.type {name},@function")
        A.label(name)
        A("s_endpgm")
        return kdesc(name, 256)
    for i in range(8):
        P[f"e{i}"] = (f"e{i}_kernel", gen_empty, 256, 64, 0)
    try:
        import parta
        P.update(parta.PARTS)
    except ImportError:
        pass
    open(sys.argv[2], "w").write(build([P[k] for k in which.split(",")]))
```

```python
import os
from asmlib import *
from common import *

E_ = lambda k, d: int(os.environ.get(k, str(d)))
XO, NP, RI, RJ = E_("XO", 3), E_("NP", 2), E_("RI", 0), E_("RJ", 0)
XO2, NP2 = E_("XO2", 2), E_("NP2", 1)
PRO = E_("PRO", 2)
HD = E_("HD", 12)
CD = E_("CD", 4)
NOAUX = E_("NOAUX", 0)
CODEPF = E_("CODEPF", 1)
NS = 3
R = 7
LA = E_('LA', 2)
FORCE_REMOTE = E_('FORCE_REMOTE', 0)
MF = "v_mfma_f32_32x32x16_bf16"
N0 = "neg_lo:[1,0,0] neg_hi:[1,0,0]"

AX, WR, WI, BX, LRE, LIM, BRE, BIM, CRE, CIM, LDT, DSK, OUT, DBG, WS = 4, 6, 8, 10, 12, 14, 16, 18, 20, 22, 24, 26, 28, 30, 32
WAVE, TI, TJ, NONCE, TBL = 34, 35, 36, 37, 38
S0, S1, S2, S3, S4 = 40, 44, 48, 52, 56
T0, T1, T2, T3, T4, T5, T6, T7, T8, T9 = range(60, 70)
MSK, CNT, LOCAL, PG = 90, 92, 100, 101
L_XCH = 122880
L_SYNC = 126976
L_AX = 131072
L_W = 147456
WS_CNT = 0x1000
CNT_A, CNT_B = WS_CNT, WS_CNT + 16*128
FLG_A, FLG_B = 0x84000, 0x86000
FLG_X = 0x8000
FLG_H = 0x60000
CPRO1 = E_("CPRO1", 2)
CPRO2 = E_("CPRO2", 2)
CTOUCH = E_("CTOUCH", 1)
FTOUCH = E_("FTOUCH", 1)
LBAT = E_("LBAT", 16)
XBF = E_("XBF", 1)
SLP_H, SLP_A = E_("SLP_H", 4), E_("SLP_A", 2)
NT = " nt" if E_("NT", 1) else ""
NTX = " nt"
OST = {0: "", 1: " nt", 2: " sc1", 3: " sc1 nt"}[E_("OST", 0)]
NTK = E_("NTK", 0)
NTC = " nt" if E_("NTC", 0) else ""


def sp(a):
    return f"s[{a}:{a+1}]"


def srd(A, d, base, soff=None, const=0, size=None, size_s=None):
    if soff is None and const == 0:
        A(f"s_mov_b32 s{d}, s{base}\ns_mov_b32 s{d+1}, s{base+1}")
    else:
        if soff is not None and const:
            A(f"s_add_u32 s{d+2}, s{soff}, {const}")
            o = f"s{d+2}"
        elif soff is not None:
            o = f"s{soff}"
        else:
            o = str(const)
        A(f"s_add_u32 s{d}, s{base}, {o}\ns_addc_u32 s{d+1}, s{base+1}, 0")
    if size_s is not None:
        A(f"s_sub_u32 s{d+2}, {size}, s{size_s}")
    else:
        A(f"s_mov_b32 s{d+2}, {size}")
    A(f"s_mov_b32 s{d+3}, 0x20000")


def r4(d):
    return f"s[{d}:{d+3}]"


_u = [0]


def uid(p):
    _u[0] += 1
    return f"L_{p}{_u[0]}"


def get_nonce(A, vt):
    l, d = uid("n"), uid("nd")
    A(f"v_mov_b32 v{vt}, 0")
    A.label(l)
    A(f"global_load_dword v{vt+1}, v{vt}, {sp(DBG)} sc1")
    A("s_waitcnt vmcnt(0)")
    A(f"v_readfirstlane_b32 s{NONCE}, v{vt+1}")
    A(f"s_cmp_eq_u32 s{NONCE}, 0")
    A(f"s_cbranch_scc1 {l}")


def signal(A, sshard, cnt, flg, expect, vt):
    d = uid("sg")
    A(f"s_lshl_b32 s{CNT}, s{sshard}, 7\ns_add_u32 s{CNT}, s{CNT}, {cnt}")
    A(f"v_mov_b32 v{vt}, s{CNT}\nv_mov_b32 v{vt+1}, 1")
    A("s_waitcnt vmcnt(0)")
    A("s_mov_b64 exec, 1")
    A(f"global_atomic_add v{vt+2}, v{vt}, v{vt+1}, {sp(WS)} sc0 sc1")
    A(f"v_add_u32 v{vt}, {flg - cnt}, v{vt}\nv_mov_b32 v{vt+1}, s{NONCE}")
    A("s_waitcnt vmcnt(0)")
    A(f"v_readfirstlane_b32 s{CNT}, v{vt+2}")
    A(f"s_add_u32 s{CNT}, s{CNT}, 1\ns_cmp_lg_u32 s{CNT}, {expect}")
    A(f"s_cbranch_scc1 {d}")
    A(f"global_store_dword v{vt}, v{vt+1}, {sp(WS)} sc1")
    A.label(d)
    A("s_mov_b64 exec, -1")


def set_flag(A, soff, vt):
    A(f"v_mov_b32 v{vt}, s{soff}\nv_mov_b32 v{vt+1}, s{NONCE}")
    A("s_waitcnt vmcnt(0)")
    A("s_mov_b64 exec, 1")
    A(f"global_store_dword v{vt}, v{vt+1}, {sp(WS)} sc1")
    A("s_mov_b64 exec, -1")


def wait_cnt(A, vaddr, vt, sleep):
    l, d = uid("w"), uid("wd")
    A(f"s_mov_b32 s{CNT}, 0")
    A.label(l)
    A(f"global_load_dword v{vt}, v{vaddr}, {sp(WS)} sc1")
    A("s_waitcnt vmcnt(0)")
    A(f"v_cmp_ne_u32 vcc, s{NONCE}, v{vt}")
    A(f"s_cbranch_vccz {d}")
    if sleep:
        A(f"s_sleep {sleep}")
    A(f"s_add_u32 s{CNT}, s{CNT}, 1\ns_cmp_lt_u32 s{CNT}, {SPIN_MAX}")
    A(f"s_cbranch_scc1 {l}")
    A.label(d)


F, T = 192, 224


import struct as _st


def fl(x):
    return hex(_st.unpack("<I", _st.pack("<f", x))[0])


def lane_float(A, vn, vh, t):
    A(f"v_and_b32 v{t}, 31, v1\nv_cvt_f32_u32 v{t}, v{t}\nv_lshrrev_b32 v{t+1}, 5, v1\nv_lshlrev_b32 v{t+1}, 2, v{t+1}\nv_cvt_f32_u32 v{t+1}, v{t+1}")


def make_F(A, t):
    lane_float(A, None, None, t)
    A(f"v_mul_f32 v{t+1}, v{t}, v{t+1}\nv_mul_f32 v{t+1}, {fl(1/32)}, v{t+1}")
    for i in range(16):
        c = 8*(i >> 2) + (i & 3)
        a = t + 2 + 3*(i & 1)
        A(f"v_fmamk_f32 v{a}, v{t}, {fl(c/32)}, v{t+1}\nv_fract_f32 v{a}, v{a}")
        A(f"v_cos_f32 v{a+1}, v{a}\nv_sin_f32 v{a+2}, v{a}")
        A(f"v_cvt_pk_bf16_f32 v{F+i}, v{a+1}, v{a+2}\nv_cvt_pk_bf16_f32 v{F+16+i}, -v{a+2}, v{a+1}")


def make_T(A, dst, t, half):
    lane_float(A, None, None, t)
    if not half:
        A(f"v_mul_f32 v{t+1}, v{t}, v{t+1}\nv_mul_f32 v{t+1}, {fl(1/1024)}, v{t+1}")
    else:
        A(f"v_mul_f32 v{t}, {fl(1/2048)}, v{t}\nv_fmamk_f32 v{t+1}, v{t+1}, {fl(1/64)}, v{t}")
    for i in range(16):
        c = 8*(i >> 2) + (i & 3)
        a = t + 2 + (i & 1)
        if not half:
            A(f"v_fmamk_f32 v{a}, v{t}, {fl(c/1024)}, v{t+1}")
        else:
            A(f"v_add_f32 v{a}, {fl(c/64)}, v{t+1}")
        A(f"v_cos_f32 v{dst+i}, v{a}\nv_sin_f32 v{dst+16+i}, -v{a}")


def stage1(A, src, D, stride=4):
    for c in range(2):
        for s_ in range(4):
            cc = "0" if s_ == 0 else v(D+16*c, 16)
            A(f"{MF} {v(D+16*c,16)}, {v(src+stride*s_,4)}, {v(F+16*c+4*s_,4)}, {cc}")


def twiddle(A, D, dst, tmp):
    for i in range(16):
        re, im, tr, ti = D+i, D+16+i, T+i, T+16+i
        t = tmp + 2*(i & 3)
        A(f"v_mul_f32 v{t}, v{re}, v{tr}\nv_mul_f32 v{t+1}, v{re}, v{ti}")
        A(f"v_fma_f32 v{t}, -v{im}, v{ti}, v{t}\nv_fmac_f32 v{t+1}, v{im}, v{tr}")
        A(f"v_cvt_pk_bf16_f32 v{dst+i}, v{t}, v{t+1}")


def stage2(A, src, D):
    for c in range(2):
        for s_ in range(4):
            cc = "0" if s_ == 0 else v(D+16*c, 16)
            A(f"{MF} {v(D+16*c,16)}, {v(F+16*c+4*s_,4)}, {v(src+4*s_,4)}, {cc}")


W_ = T6
NBW = 2048*513*2
SQ, SO, ST = 184, 185, 186
VA1, VA2, VA8, VLIN = 4, 5, 6, 7
_ph = [0]


def l_arrive(A):
    _ph[0] += 1
    A(f"v_mov_b32 v{ST+4}, {_ph[0]}")
    A(f"s_mov_b64 exec, 1\nds_write_b32 v{SO}, v{ST+4}\ns_mov_b64 exec, -1")
    return _ph[0]


def l_check(A, n):
    l, d = uid("lc"), uid("lcd")
    A.label(l)
    A(f"ds_read_b128 {v(ST,4)}, v{SQ}\ns_waitcnt lgkmcnt(0)")
    A(f"v_min3_u32 v{ST}, v{ST}, v{ST+1}, v{ST+2}\nv_min_u32 v{ST}, v{ST}, v{ST+3}")
    A(f"v_readfirstlane_b32 s{CNT}, v{ST}")
    A(f"s_cmp_ge_u32 s{CNT}, {n}")
    A(f"s_cbranch_scc1 {d}")
    A(f"s_sleep 1\ns_branch {l}")
    A.label(d)


def l_sync(A):
    l_check(A, l_arrive(A))


def aux_setup(A):
    srd(A, S2, WR, size=NBW)
    srd(A, S3, WI, size=NBW)
    A(f"s_and_b32 s{T0}, s2, 31\ns_lshr_b32 s{T1}, s2, 5\ns_lshl_b32 s{T1}, s{T1}, 7\ns_add_u32 s{T0}, s{T0}, s{T1}")
    A(f"s_lshl_b32 s{T1}, s{W_}, 5\ns_add_u32 s{T7}, s{T0}, s{T1}\ns_lshl_b32 s{T0}, s{T7}, 12")
    srd(A, AX, AX, T0, 0, 0x1000)
    A("v_lshlrev_b32 v2, 4, v1\nv_xor_b32 v3, 128, v2")
    A(f"s_lshl_b32 s{T8}, s{W_}, 12\ns_add_u32 s{T8}, s{T8}, {L_AX}")
    A(f"s_and_b32 s{T0}, s2, 7\ns_bfe_u32 s{T1}, s2, 0x10003\ns_bfe_u32 s{T2}, s2, 0x20004\ns_lshr_b32 s{T3}, s2, 6")
    A(f"s_lshr_b32 s{T4}, s{T0}, 1\ns_lshl_b32 s{T4}, s{T4}, 3\ns_lshl_b32 s{T5}, s{T1}, 2\ns_add_u32 s{T4}, s{T4}, s{T5}")
    A(f"s_and_b32 s{T5}, s{T0}, 1\ns_lshl_b32 s{T5}, s{T5}, 1\ns_add_u32 s{T4}, s{T4}, s{T5}\ns_lshl_b32 s{T4}, s{T4}, 5")
    A(f"s_lshl_b32 s{T5}, s{T2}, 3\ns_add_u32 s{T4}, s{T4}, s{T5}\ns_lshl_b32 s{T5}, s{W_}, 1\ns_add_u32 s{T4}, s{T4}, s{T5}\ns_mul_i32 s{T4}, s{T4}, 1026")
    A(f"s_lshl_b32 s{T5}, s{T3}, 8\ns_add_u32 s{T9}, s{T4}, s{T5}")
    A("v_bfe_u32 v8, v1, 4, 1\nv_mul_u32_u24 v8, 32832, v8")
    A(f"v_lshrrev_b32 v9, 5, v1\ns_mov_b32 s{T5}, 1050624\nv_mul_lo_u32 v9, s{T5}, v9\nv_add_u32 v8, v8, v9")
    A(f"v_and_b32 v9, 15, v1\ns_lshl_b32 s{T5}, s{W_}, 1\nv_xor_b32 v9, s{T5}, v9")
    A("v_lshl_add_u32 v18, v9, 4, v8\nv_xor_b32 v9, 1, v9\nv_lshl_add_u32 v19, v9, 4, v8\nv_add_u32 v19, 1026, v19")
    A(f"s_bfe_u32 s{T4}, s2, 0x20005\ns_lshl_b32 s{T4}, s{T4}, 8\ns_bfe_u32 s{T5}, s2, 0x10004\ns_lshl_b32 s{T5}, s{T5}, 6\ns_add_u32 s{T4}, s{T4}, s{T5}")
    A(f"s_bfe_u32 s{T5}, s2, 0x10003\ns_lshl_b32 s{T5}, s{T5}, 7\ns_add_u32 s{T4}, s{T4}, s{T5}\ns_and_b32 s{T5}, s2, 7\ns_lshl_b32 s{T5}, s{T5}, 2\ns_add_u32 s{T4}, s{T4}, s{T5}")
    A(f"v_bfe_u32 v8, v1, 3, 2\nv_add_u32 v8, s{T4}, v8\nv_bfe_u32 v9, v1, 2, 1\nv_lshl_add_u32 v8, v9, 5, v8\nv_bfe_u32 v9, v1, 1, 1\nv_lshl_add_u32 v8, v9, 10, v8")
    A("v_sub_u32 v9, 2048, v8\nv_and_b32 v9, 2047, v9\nv_and_b32 v10, 1, v1\nv_cmp_eq_u32 vcc, 1, v10\nv_cndmask_b32 v8, v8, v9, vcc")
    A(f"v_mul_u32_u24 v17, 1026, v8\ns_lshr_b32 s{T4}, s2, 7\ns_lshl_b32 s{T4}, s{T4}, 10\nv_add_u32 v17, s{T4}, v17")


def aux_issue(A, vm):
    for c in range(2):
        A(f"s_add_u32 m0, s{T8}, {c*2048}")
        A(f"s_mov_b32 s{CNT}, {c*2048}")
        for u in range(2):
            vm.op(f"buffer_load_dwordx4 v{2+c}, {r4(AX)}, s{CNT} offen offset:{u*1024}{NT} lds", "aux")
    for bb in range(2):
        for arr in range(2):
            A(f"s_add_u32 m0, s{T8}, {L_W - L_AX + bb*2048 + arr*1024}")
            vm.op(f"buffer_load_dwordx4 v{18+bb}, {r4(S2 if arr == 0 else S3)}, s{T9} offen{NT} lds", "aux")
    nw = uid("nw")
    A(f"s_cmp_lg_u32 s{W_}, 3\ns_cbranch_scc1 {nw}")
    A("s_mov_b32 exec_hi, 0")
    A(f"buffer_load_ushort v{WSP}, v17, {r4(S2)}, 0 offen{NT}")
    A(f"buffer_load_ushort v{WSP+1}, v17, {r4(S3)}, 0 offen{NT}")
    A("s_mov_b64 exec, -1")
    A.label(nw)


WSP, IN, D, MID, TMP = 88, 24, 40, 72, 168
DY, W, TT = 72, 104, 136
M_, SPC, CJ, SGN = T0, T1, T2, T3
K0 = E_("K0", 16)


MID_ = 6 <= K0 < 16
END = K0 >= 16
LPRIO = E_('LPRIO', 3)


def img(i):
    ka = 8*(i >> 2) + (i & 3)
    return (VA1, ka*1024) if i < 8 else (VA8, 0) if i == 8 else (VA2, (27 - ka)*1024)


def aux_pre(A):
    A(f"v_mov_b32 v{SQ}, {L_SYNC + 16}\ns_lshl_b32 s{T4}, s{W_}, 2\nv_add_u32 v{SO}, s{T4}, v{SQ}")
    A("v_and_b32 v8, 31, v1\nv_lshrrev_b32 v9, 5, v1\nv_and_b32 v10, 1, v1")
    A(f"v_lshrrev_b32 v11, 1, v8\nv_lshlrev_b32 v{VA1}, 6, v11\nv_lshl_add_u32 v{VA1}, v10, 4, v{VA1}\nv_lshl_add_u32 v{VA1}, v9, 12, v{VA1}")
    A(f"v_add_u32 v11, v11, v10\nv_lshlrev_b32 v11, 6, v11\nv_lshl_add_u32 v11, v10, 4, v11\nv_lshl_add_u32 v11, v9, 12, v11\nv_sub_u32 v{VA2}, {5120 + 48}, v11")
    for r in (VA1, VA2):
        A(f"v_bfe_u32 v11, v{r}, 7, 1\nv_lshlrev_b32 v11, 5, v11\nv_xor_b32 v{r}, v{r}, v11")
    A(f"v_add_u32 v{VA8}, 11264, v{VA2}\nv_and_b32 v{VA8}, 0x3fff, v{VA8}")
    A(f"s_add_u32 s{T4}, s{T4}, {L_AX}")
    for r in (VA1, VA2, VA8):
        A(f"v_add_u32 v{r}, s{T4}, v{r}")
    A(f"v_bfe_u32 v11, v1, 3, 1\nv_lshlrev_b32 v11, 5, v11\nv_xor_b32 v{VLIN}, v2, v11")

    A("v_bfe_u32 v12, v1, 2, 1\nv_mul_u32_u24 v12, 2176, v12")
    A("v_bfe_u32 v13, v1, 3, 1\nv_lshl_add_u32 v12, v13, 6, v12\nv_lshl_add_u32 v12, v9, 8, v12")
    A("v_bfe_u32 v13, v1, 4, 1\nv_lshl_add_u32 v12, v13, 5, v12\nv_and_b32 v13, 3, v1\nv_lshl_add_u32 v12, v13, 3, v12")
    A(f"v_add_u32 v12, s{T8}, v12\nv_xor_b32 v13, 128, v12")
    A(f"s_lshl_b32 s{T4}, s2, 14\ns_lshl_b32 s{T5}, s{W_}, 12\ns_add_u32 s{T4}, s{T4}, s{T5}")
    srd(A, S0, WS, T4, WS_Z1, 0x1000)
    srd(A, S1, WS, T4, WS_Z3, 0x1000)
    A(f"v_and_b32 v14, 7, v1\nv_lshrrev_b32 v15, 3, v1\nv_xor_b32 v16, v14, v15\nv_lshlrev_b32 v16, 4, v16\nv_lshl_add_u32 v16, v14, 11, v16")
    A(f"s_lshr_b32 s{T4}, s{W_}, 1\ns_lshl_b32 s{T4}, s{T4}, 7\ns_and_b32 s{T5}, s{W_}, 1\ns_lshl_b32 s{T5}, s{T5}, 3\ns_add_u32 s{T4}, s{T4}, s{T5}\ns_add_u32 s{T4}, s{T4}, {L_W}")
    A(f"v_add_u32 v16, s{T4}, v16")
    A("v_lshlrev_b32 v15, 16, v15\nv_lshl_add_u32 v15, v14, 4, v15")
    A(f"s_lshl_b32 s{T4}, s{T3}, 7\ns_lshr_b32 s{T5}, s{W_}, 1\ns_lshl_b32 s{T5}, s{T5}, 6\ns_add_u32 s{T4}, s{T4}, s{T5}")
    A(f"s_and_b32 s{T5}, s{W_}, 1\ns_lshl_b32 s{T5}, s{T5}, 2\ns_add_u32 s{T4}, s{T4}, s{T5}\ns_lshl_b32 s{T4}, s{T4}, 13")
    A(f"s_lshl_b32 s{T5}, s{T0}, 10\ns_add_u32 s{T4}, s{T4}, s{T5}\ns_lshl_b32 s{T5}, s{T1}, 9\ns_add_u32 s{T4}, s{T4}, s{T5}\ns_lshl_b32 s{T5}, s{T2}, 7\ns_add_u32 s{T4}, s{T4}, s{T5}")
    srd(A, S4, WS, T4, WS_WT, 0x400000, T4)
    make_F(A, 104)
    make_T(A, T, 104, 0)


def aux_hook(A, vm, k):
    RR = lambda arr, kind: 104 + (arr*4 + kind)*2
    if k == K0:
        mark(A, 6)
        for s_ in range(4):
            for u in range(2):
                A(f"ds_read_b64_tr_b16 {v(IN+4*s_+2*u,2)}, v{12+u} offset:{s_*512}")
        for arr in range(2):
            for kind in range(4):
                A(f"ds_read_b64 {v(RR(arr,kind),2)}, v16 offset:{arr*1024 + kind*256}")
        A(f"s_mov_b32 s{T4}, 0x05040100\ns_mov_b32 s{T5}, 0x07060302")
        A("s_waitcnt lgkmcnt(8)")
        stage1(A, IN, D)
        A("s_waitcnt lgkmcnt(0)")
        for kap in range(4):
            o = 120 + 4*kap
            for e in range(2):
                for h2 in range(2):
                    kind = e + 2*h2
                    A(f"v_perm_b32 v{o+2*e+h2}, v{RR(1,kind)+kap//2}, v{RR(0,kind)+kap//2}, s{T4 + kap % 2}")
    if k == K0 + MID_:
        twiddle(A, D, MID, TMP)
        stage2(A, MID, D)
    if k == K0 + 1 + MID_:
        for i in range(16):
            A(f"v_cvt_pk_bf16_f32 v{MID+i}, v{D+i}, v{D+16+i}")
            a, o = img(i)
            A(f"ds_write_b32 v{a}, v{MID+i} offset:{o}")
        A("s_waitcnt lgkmcnt(0)")
    if k == K0 + 2 + MID_:
        A(f"v_add_u32 v8, s{T8}, v{VLIN}")
        for u in range(4):
            A(f"ds_read_b128 {v(MID+4*u,4)}, v8 offset:{u*1024}")
        for kap in range(4):
            A(f"s_mov_b32 s{CNT}, {kap*8192}")
            vm.op(f"buffer_store_dwordx4 {v(120+4*kap,4)}, v15, {r4(S4)}, s{CNT} offen sc1", "ast")
        for u in range(4):
            A(f"s_waitcnt lgkmcnt({3-u})")
            vm.op(f"buffer_store_dwordx4 {v(MID+4*u,4)}, v2, {r4(S0)}, 0 offen offset:{u*1024} sc1", "ast")
        nw = uid("nw")
        A(f"s_cmp_lg_u32 s{W_}, 3\ns_cbranch_scc1 {nw}")
        A(f"s_lshr_b32 s{T4}, s2, 7\ns_sub_u32 s{T4}, 513, s{T4}\ns_lshl_b32 s{T4}, s{T4}, 13\ns_and_b32 s{T5}, s2, 127\ns_lshl_b32 s{T5}, s{T5}, 6\ns_add_u32 s{T4}, s{T4}, s{T5}")
        srd(A, S4, WS, T4, WS_WT, 64)
        A(f"v_lshlrev_b32 v{WSP}, 16, v{WSP}\nv_lshlrev_b32 v{WSP+1}, 16, v{WSP+1}\nv_lshlrev_b32 v8, 1, v1")
        A(f"v_add_f32_dpp v{WSP+2}, v{WSP}, v{WSP} quad_perm:[1,0,3,2] row_mask:0xf bank_mask:0xf")
        A(f"v_subrev_f32_dpp v{WSP+3}, v{WSP+1}, v{WSP+1} quad_perm:[1,0,3,2] row_mask:0xf bank_mask:0xf")
        A(f"v_mul_f32 v{WSP+2}, 0.5, v{WSP+2}\nv_mul_f32 v{WSP+3}, 0.5, v{WSP+3}")
        A(f"v_cvt_pk_bf16_f32 v{WSP}, v{WSP+2}, v{WSP+3}")
        A("s_mov_b32 exec_lo, 0x55555555\ns_mov_b32 exec_hi, 0")
        A(f"buffer_store_dword v{WSP}, v8, {r4(S4)}, 0 offen sc1")
        A("s_mov_b64 exec, -1")
        A.label(nw)
        if not (END or MID_):
            A("v_mov_b32 v20, 0")
            vm.op(f"global_load_dword v21, v20, {sp(DBG)} sc1", "nonce")
        mark(A, 2)
    KS = 99 if END or MID_ else K0 + 3 + LA
    if k == KS:
        x, y = uid("sg"), uid("sg")
        A(f"v_readfirstlane_b32 s{NONCE}, v21\ns_cmp_lg_u32 s{NONCE}, 0\ns_cbranch_scc1 {y}")
        get_nonce(A, 20)
        A.label(y)
        A(f"s_cmp_lg_u32 s{W_}, 0\ns_cbranch_scc1 {x}")
        A(f"s_and_b32 s{T4}, s2, 15\ns_lshl_b32 s{T4}, s{T4}, 7\ns_add_u32 s{T4}, s{T4}, {CNT_A}\nv_mov_b32 v20, s{T4}\nv_mov_b32 v21, 1")
        A(f"s_mov_b64 exec, 1\nglobal_atomic_add v22, v20, v21, {sp(WS)} sc0 sc1\ns_mov_b64 exec, -1")
        A.label(x)
    if k == (5 if END or MID_ else KS + 1):
        make_T(A, TT, 104, 1)
    if k == (19 if END or MID_ else KS + 2):
        A(f"s_and_b32 s{M_}, s2, 7\ns_lshl_b32 s{M_}, s{M_}, 5\ns_lshr_b32 s{T4}, s2, 3\ns_add_u32 s{M_}, s{M_}, s{T4}")
        A(f"s_lshr_b32 s{T4}, s{W_}, 1\ns_xor_b32 s{T4}, s{T4}, s{W_}\ns_and_b32 s{T4}, s{T4}, 1")
        A(f"s_or_b32 s{T5}, s{T4}, s{M_}\ns_cmp_eq_u32 s{T5}, 0\ns_cselect_b32 s{SPC}, 1, 0")
        A(f"s_lshl_b32 s{T5}, s{M_}, 1\ns_add_u32 s{T4}, s{T4}, s{T5}")
        A(f"s_lshr_b32 s{T5}, s{W_}, 1\ns_sub_u32 s{T9}, 513, s{T5}\ns_cmp_eq_u32 s{SPC}, 1\ns_cselect_b32 s{T4}, s{T9}, s{T4}\ns_cselect_b32 s{T5}, 0, s{T5}")
        A(f"s_lshl_b32 s{CJ}, s{T5}, 31\ns_or_b32 s{SGN}, s{CJ}, 0x3f800000\ns_lshl_b32 s{T4}, s{T4}, 13")
        srd(A, S2, WS, T4, WS_WT, 0x2000)
        A(f"s_lshl_b32 s{T4}, s{W_}, 20\ns_lshl_b32 s{T5}, s{M_}, 6\ns_add_u32 s{T4}, s{T4}, s{T5}")
        srd(A, S3, WS, T4, WS_Z1, 0x100000, T5)
        srd(A, S4, WS, T4, WS_Z3, 0x100000, T5)
        A("v_lshrrev_b32 v8, 2, v1\nv_lshlrev_b32 v8, 14, v8\nv_and_b32 v9, 3, v1\nv_lshrrev_b32 v10, 4, v1\nv_xor_b32 v9, v9, v10\nv_lshl_add_u32 v14, v9, 4, v8")
        A(f"v_and_b32 v8, 31, v1\nv_bfe_u32 v9, v1, 2, 2\nv_xor_b32 v9, s{W_}, v9\nv_lshlrev_b32 v9, 4, v9\nv_lshl_add_u32 v9, v8, 6, v9")
        A(f"v_lshrrev_b32 v8, 5, v1\nv_lshl_add_u32 v9, v8, 11, v9\nv_add_u32 v15, {L_AX}, v9")
        A(f"s_lshl_b32 s{T4}, s{W_}, 13\ns_add_u32 s{T4}, s{T4}, {L_AX}\nv_add_u32 v16, s{T4}, v2")
        A(f"s_xor_b32 s{T5}, s{T4}, {3 << 13}\ns_cmp_eq_u32 s{SPC}, 1\ns_cselect_b32 s{T5}, s{T4}, s{T5}\nv_add_u32 v17, s{T5}, v2")
        A(f"v_add_u32 v18, s{T8}, v2")
        for kk in range(16):
            A(f"v_pk_mul_f32 {v(TT+2*kk,2)}, {sp(CJ)}, {v(TT+2*kk,2)} op_sel:[1,0]")
    if k == KS + 1 + LA:
        x = uid("sg")
        A(f"s_cmp_lg_u32 s{W_}, 0\ns_cbranch_scc1 {x}")
        A(f"v_readfirstlane_b32 s{T4}, v22\ns_cmp_lg_u32 s{T4}, 15\ns_cbranch_scc1 {x}")
        A(f"v_add_u32 v20, {FLG_A - CNT_A}, v20\nv_mov_b32 v21, s{NONCE}")
        A(f"s_mov_b64 exec, 1\nglobal_store_dword v20, v21, {sp(WS)} sc1\ns_mov_b64 exec, -1")
        A.label(x)
    assert END or (MID_ and K0 + 3 <= 15) or KS + 1 + LA < 14
    if k == 14 and not (END or MID_):
        A(f"v_and_b32 v20, 15, v1\nv_lshlrev_b32 v20, 7, v20\nv_add_u32 v20, {FLG_A}, v20")
        vm.op(f"global_load_dword v21, v20, {sp(WS)} sc1", "poll")


def a2_loads(A):
    for u in range(4):
        A(f"s_add_u32 m0, s{T8}, {u*1024}\ns_mov_b32 s{T4}, {u << 18}")
        A(f"buffer_load_dwordx4 v14, {r4(S3)}, s{T4} offen sc1 lds")
    A(f"s_movk_i32 s{T4}, 0x1000")
    for it in range(8):
        A(f"buffer_load_dwordx4 {v(W+4*it,4)}, v2, {r4(S2)}, {'0' if it < 4 else f's{T4}'} offen offset:{(it & 3)*1024} sc1")


def aux_rest(A, vm):
    def phase(cnt, flg):
        A("s_waitcnt vmcnt(0)")
        if E_("AM", 0) and cnt == CNT_A:
            mark(A, 5)
        p = l_arrive(A)
        x = uid("ph")
        A(f"s_cmp_lg_u32 s{W_}, 0\ns_cbranch_scc1 {x}")
        l_check(A, p)
        y, pl_, nok = uid("sg"), uid("sp"), uid("nok")
        A(f"s_and_b32 s{T4}, s2, 15\ns_lshl_b32 s{T5}, s{T4}, 7\ns_add_u32 s{T5}, s{T5}, {cnt}")
        A(f"s_add_u32 s{MSK}, s{WS}, s{T5}\ns_addc_u32 s{MSK+1}, s{WS+1}, 0\ns_mov_b32 s{T5}, 1")
        A(f"s_atomic_add s{T5}, {sp(MSK)}, 0x0 glc")
        A(f"s_lshl_b32 s{T4}, s{T4}, 2\ns_add_u32 s{T4}, s{T4}, {flg}\nv_lshl_add_u32 v20, v1, 7, s{T4}\nv_mov_b32 v21, s{NONCE}")
        A(f"s_and_b32 s{T4}, s2, 63\ns_lshl_b32 s{T4}, s{T4}, 7\ns_add_u32 s{T4}, s{T4}, {flg}")
        A("s_waitcnt lgkmcnt(0)")
        A(f"s_cmp_lg_u32 s{T5}, 15\ns_cbranch_scc1 {y}")
        A(f"global_store_dword v20, v21, {sp(WS)} sc1")
        A.label(y)
        if E_("AM", 0) and cnt == CNT_A:
            mark(A, 6)
        A(f"s_add_u32 s{MSK}, s{WS}, s{T4}\ns_addc_u32 s{MSK+1}, s{WS+1}, 0\ns_mov_b32 s{T4}, s{NONCE}\ns_mov_b32 s{T5}, s{NONCE}\ns_mov_b32 s{CNT}, 0")
        A(f"s_branch {pl_}")
        A.label(nok)
        A(f"s_add_u32 s{CNT}, s{CNT}, 1\ns_cmp_ge_u32 s{CNT}, {SPIN_MAX}\ns_cbranch_scc1 {x}")
        if SLP_A:
            A(f"s_sleep {SLP_A}")
        A.label(pl_)
        A(f"s_load_dwordx16 s[4:19], {sp(MSK)}, 0x0 glc\ns_waitcnt lgkmcnt(0)")
        for q in range(8):
            A(f"s_cmp_eq_u64 s[{4+2*q}:{5+2*q}], {sp(T4)}\ns_cbranch_scc0 {nok}")
        A.label(x)
        l_sync(A)
    if END:
        aux_issue(A, vm)
        A("s_barrier\ns_barrier")
        A(f"s_setprio {LPRIO}")
        get_nonce(A, 20)
        for k in range(3):
            l_sync(A)
            aux_hook(A, vm, K0 + k)
        aux_hook(A, vm, 19)
        phase(CNT_A, FLG_A)
        a2_loads(A)
    elif MID_:
        aux_hook(A, vm, 19)
        A("s_barrier\ns_barrier")
        A(f"s_setprio {LPRIO}")
        get_nonce(A, 20)
        phase(CNT_A, FLG_A)
        a2_loads(A)
    else:
        late, go = uid("l"), uid("g")
        A("s_waitcnt vmcnt(0)")
        A(f"v_cmp_ne_u32 vcc, s{NONCE}, v21")
        A(f"s_cbranch_vccnz {late}")
        a2_loads(A)
        A(f"s_barrier\ns_barrier\ns_branch {go}")
        A.label(late)
        A("s_barrier\ns_barrier")
        wait_cnt(A, 20, 21, SLP_A)
        a2_loads(A)
        A.label(go)
        A(f"s_setprio {LPRIO}")
    mark(A, 7)
    A("s_waitcnt vmcnt(8)")
    if E_("AM", 0):
        mark(A, 1)
    l_sync(A)
    INS = 72
    for s_ in range(4):
        A(f"ds_read_b128 {v(INS+4*s_,4)}, v15 offset:{s_*4096}")
    A("s_waitcnt lgkmcnt(0)")
    if E_("AM", 0) == 2:
        mark(A, 2)
    p6 = l_arrive(A)
    A(f"s_lshl_b32 s{T4}, s{SPC}, 31\ns_or_b32 s{T4}, s{T4}, s{CJ}")
    fl, nwr = uid("fft"), uid("nwr")
    A.label(fl)
    for i in range(16):
        A(f"v_xor_b32 v{IN+i}, s{T4}, v{INS+i}")
    stage1(A, IN, D)
    twiddle(A, D, IN, TMP)
    stage2(A, IN, D)
    l_check(A, p6)
    if E_("AM", 0) == 2:
        mark(A, 5)
    A(f"s_cmp_eq_u32 s{SPC}, 2\ns_cbranch_scc1 {nwr}")
    for c in range(8):
        A(f"ds_write_b128 v16, {v(D+4*c,4)} offset:{c*1024}")
    A(f"s_cmp_eq_u32 s{SPC}, 0\ns_cbranch_scc1 {nwr}")
    A(f"s_mov_b32 s{SPC}, 2\ns_mov_b32 s{T4}, 0\ns_branch {fl}")
    A.label(nwr)
    A("s_waitcnt lgkmcnt(0)")
    l_sync(A)
    for c in range(8):
        A(f"ds_read_b128 {v(DY+4*c,4)}, v17 offset:{c*1024}")
    A("s_waitcnt vmcnt(0) lgkmcnt(0)")
    if E_("AM", 0):
        mark(A, 4)
    p8 = l_arrive(A)
    for i in range(16):
        w = W + 2*i
        r1, i1, r2, i2, Ar, Ai, Or, Oi = (TMP + 8*(i & 1) + c for c in range(8))
        A(f"v_lshlrev_b32 v{r1}, 16, v{w}\nv_and_b32 v{i1}, 0xffff0000, v{w}")
        A(f"v_lshlrev_b32 v{r2}, 16, v{w+1}\nv_and_b32 v{i2}, 0xffff0000, v{w+1}")
        Dr, Di, Gr, Gi = r1, i1, r2, i2
        Xr, Xi, Yr, Yi, rho, sg = D+i, D+16+i, DY+i, DY+16+i, TT+i, TT+16+i
        A(f"v_add_f32 v{Ar}, v{r1}, v{r2}\nv_add_f32 v{Ai}, v{i1}, v{i2}")
        A(f"v_sub_f32 v{Dr}, v{r1}, v{r2}\nv_sub_f32 v{Di}, v{i1}, v{i2}")
        A(f"v_mul_f32 v{Gr}, v{sg}, v{Xr}\nv_mul_f32 v{Gi}, v{sg}, v{Xi}")
        A(f"v_mul_f32 v{Or}, v{Ar}, v{Xr}\nv_mul_f32 v{Oi}, v{Ar}, v{Xi}")
        A(f"v_fma_f32 v{Gr}, -v{rho}, v{Yi}, v{Gr}\nv_fmac_f32 v{Gi}, v{rho}, v{Yr}")
        A(f"v_fma_f32 v{Or}, -v{Ai}, v{Xi}, v{Or}\nv_fmac_f32 v{Oi}, v{Ai}, v{Xr}")
        A(f"v_fmac_f32 v{Or}, v{Dr}, v{Gr}\nv_fmac_f32 v{Oi}, v{Dr}, v{Gi}")
        A(f"v_fma_f32 v{Or}, -v{Di}, v{Gi}, v{Or}\nv_fmac_f32 v{Oi}, v{Di}, v{Gr}")
        A(f"v_cvt_pk_bf16_f32 v{IN+i}, v{Oi}, v{Or}")
    if E_("AM", 0) == 2:
        mark(A, 6)
    stage1(A, IN, D)
    twiddle(A, D, IN, TMP)
    stage2(A, IN, D)
    A(f"s_lshr_b32 s{T4}, s{CJ}, 16")
    l_check(A, p8)
    for s_ in range(4):
        for r in range(4):
            i = 4*s_ + r
            A(f"v_cvt_pk_bf16_f32 v{IN+i}, v{D+i}, v{D+16+i}\nv_xor_b32 v{IN+i}, s{T4}, v{IN+i}")
        A(f"ds_write_b128 v15, {v(IN+4*s_,4)} offset:{s_*4096}")
    A("s_waitcnt lgkmcnt(0)")
    if E_("AM", 0) == 2:
        mark(A, 7)
    l_sync(A)
    for u in range(4):
        A(f"ds_read_b128 {v(IN+4*u,4)}, v18 offset:{u*1024}")
    for u in range(4):
        A(f"s_mov_b32 s{T4}, {u << 18}\ns_waitcnt lgkmcnt({3-u})")
        A(f"buffer_store_dwordx4 {v(IN+4*u,4)}, v14, {r4(S4)}, s{T4} offen sc1")
    mark(A, 3)
    A(f"s_lshl_b32 s{T4}, s{T7}, 14")
    srd(A, S0, OUT, T4, 0, 0x4000)
    A("v_and_b32 v8, 31, v1\nv_lshrrev_b32 v9, 5, v1\nv_lshlrev_b32 v14, 2, v8\nv_lshl_add_u32 v14, v9, 9, v14")
    A(f"s_mov_b32 s{T4}, 0x35000000")
    for k in range(32):
        A(f"v_mul_f32 v{T+k}, s{T4}, v{T+k}")
    phase(CNT_B, FLG_B)
    mark(A, 8)
    A(f"s_mov_b32 m0, s{T8}")
    for u in range(4):
        A(f"buffer_load_dwordx4 v{VLIN}, {r4(S1)}, 0 offen offset:{u*1024} sc1 lds")
    A("s_waitcnt vmcnt(0)")
    l_sync(A)
    for i in range(16):
        a, o = img(i)
        A(f"ds_read_b32 v{IN+i}, v{a} offset:{o}")
    A("s_waitcnt lgkmcnt(0)")
    stage1(A, IN, D)
    twiddle(A, D, IN, TMP)
    stage2(A, IN, D)
    A(f"s_movk_i32 s{T4}, 0x2000")
    O = 72
    for i in range(16):
        o = O + 2*i
        A(f"v_cvt_pk_bf16_f32 v{o+1}, v{D+16+i}, v{D+i}")
        A(f"v_lshlrev_b32 v{o}, 16, v{o+1}\nv_and_b32 v{o+1}, 0xffff0000, v{o+1}")
        off = (i >> 2)*1024 + (i & 3)*128
        A(f"buffer_store_dword v{o}, v14, {r4(S0)}, 0 offen offset:{off}{OST}")
        A(f"buffer_store_dword v{o+1}, v14, {r4(S0)}, s{T4} offen offset:{off}{OST}")


def cmul_sq(A, d, a, t):
    A(f"v_mul_f32 {v(t)}, {v(a+1)}, {v(a+1)}")
    A(f"v_mul_f32 {v(t+1)}, {v(a)}, {v(a+1)}")
    A(f"v_fma_f32 {v(d)}, {v(a)}, {v(a)}, -{v(t)}")
    A(f"v_add_f32 {v(d+1)}, {v(t+1)}, {v(t+1)}")


def horner(A, dr, di, L, pr, pi, er, ei, t):
    assert dr not in (pr, pi) and di not in (pr, pi)
    A(f"v_fma_f32 {v(t)}, {v(L)}, {v(pr)}, {v(er)}")
    A(f"v_fma_f32 {v(t+1)}, {v(L)}, {v(pi)}, {v(ei)}")
    A(f"v_fma_f32 {v(dr)}, -{v(L+1)}, {v(pi)}, {v(t)}")
    A(f"v_fma_f32 {v(di)}, {v(L+1)}, {v(pr)}, {v(t+1)}")


def loader(A, name, kidx):
    RA, RB, ROT, M0B, SOF, RV = 12, 20, 24, 25, 26, 176
    A(f"s_sub_u32 s{W_}, s{WAVE}, 4")
    A("v_lshrrev_b32 v2, 5, v1\nv_bfe_u32 v3, v1, 3, 2")
    A("v_and_b32 v4, 1, v3\nv_lshrrev_b32 v5, 1, v3")
    A("v_lshlrev_b32 v6, 5, v2\nv_lshl_add_u32 v6, v4, 4, v6\nv_add_u32 v6, v6, v5")
    A(f"s_lshr_b32 s{T0}, s{W_}, 1\ns_lshl_b32 s{T1}, s{T0}, 6\ns_and_b32 s{T2}, s{W_}, 1\ns_lshl_b32 s{T2}, s{T2}, 3\ns_add_u32 s{T1}, s{T1}, s{T2}")
    A(f"v_add_u32 v6, s{T1}, v6\nv_lshlrev_b32 v6, 11, v6")
    A(f"s_lshl_b32 s{T1}, s{T0}, 5")
    A(f"v_lshl_add_u32 v7, v2, 3, v3\nv_add_u32 v7, s{T1}, v7\nv_lshlrev_b32 v7, 11, v7")
    A("v_and_b32 v4, 7, v1\nv_lshrrev_b32 v5, 4, v1\nv_xor_b32 v4, v4, v5\nv_lshlrev_b32 v4, 4, v4")
    A("v_xor_b32 v5, 64, v4")
    for u in range(4):
        ch = 4 if u % 2 == 0 else 5
        A(f"v_add_u32 v{RV+u}, v6, v{ch}")
        if u:
            A(f"v_add_u32 v{RV+u}, {u*4096 - u*1024}, v{RV+u}")
        A(f"v_add_u32 v{RV+4+u}, v7, v{ch}")
        if u:
            A(f"v_add_u32 v{RV+4+u}, {(16*(u>>1) + 4*(u&1))*2048 - u*1024}, v{RV+4+u}")
    A(f"s_and_b32 s{T4}, s2, 7\ns_mul_i32 s{T4}, s{T4}, {XO*128}")
    A(f"s_add_u32 s{T0}, s{TI}, s{TJ}\ns_and_b32 s{T0}, s{T0}, {NP-1}\ns_mul_i32 s{T0}, s{T0}, {2048//NP}\ns_add_u32 s{T4}, s{T4}, s{T0}")
    if RI or RJ:
        A(f"s_mul_i32 s{T0}, s{TI}, {RI*128}\ns_add_u32 s{T4}, s{T4}, s{T0}\ns_mul_i32 s{T0}, s{TJ}, {RJ*128}\ns_add_u32 s{T4}, s{T4}, s{T0}")
    A(f"s_lshl_b32 s{T0}, s{TI}, 18\ns_lshl_b32 s{T1}, s{TJ}, 17")
    A("s_waitcnt lgkmcnt(0)")
    A(f"s_lshl_b32 s{M0B}, s{W_}, 12\ns_mov_b32 s{ROT}, s{T4}")
    srd(A, RA, BX, T0, 0, 0x40000)
    A(f"s_bitcmp1_b32 s{W_}, 0\ns_cselect_b32 s{T2}, s{BIM}, s{BRE}\ns_cselect_b32 s{T3}, s{BIM+1}, s{BRE+1}")
    srd(A, RB, T2, T1, 0, 0x20000)
    mark(A, 5)
    vm = VmCounter(A)

    def issue(k):
        slot = k % NS
        A(f"s_add_u32 m0, s{M0B}, {slot*32768}")
        A(f"s_add_u32 s{SOF}, s{ROT}, {k*128}\ns_and_b32 s{SOF}, s{SOF}, 0x7ff")
        for u in range(4):
            vm.op(f"buffer_load_dwordx4 v{RV+u}, {r4(RA)}, s{SOF} offen offset:{u*1024}{NTX if k < NTK else ''} lds", ("st", k))
        A(f"s_add_u32 m0, s{M0B}, {slot*32768 + 16384}")
        for u in range(4):
            vm.op(f"buffer_load_dwordx4 v{RV+4+u}, {r4(RB)}, s{SOF} offen offset:{u*1024}{NTX if k < NTK else ''} lds", ("st", k))
    AUXAT = E_("AUXAT", 3)
    issue(0)
    issued = 1
    if not NOAUX:
        aux_setup(A)
        aux_pre(A)
        if AUXAT == 1 and not END:
            aux_issue(A, vm)
    for k in range(-1, 16):
        if k >= 0:
            vm.wait_for(("st", k))
            A("s_barrier")
        if k in (0, 12):
            mark(A, 1 + k//4)
        while issued < min(16, k + LA + 1):
            issue(issued)
            issued += 1
            if not NOAUX and not END and issued == AUXAT:
                aux_issue(A, vm)
        if not NOAUX and k >= 0:
            assert K0 >= AUXAT
            aux_hook(A, vm, k)
    assert issued == 16
    if NOAUX:
        A("s_barrier\ns_barrier")
    else:
        aux_rest(A, vm)
    stamp_end(A, kidx, WAVE)
    A("s_endpgm")


def gemm_waves(A, name, kidx):
    ACC = lambda T_, c: 64 + (T_*2 + c)*16
    FR = lambda X, f: 32 + X*16 + f*4
    AD = lambda st, op, ks: 128 + st*8 + op*4 + ks
    LAM, KC, L16, L128, L256 = 24, 26, 28, 30, 2
    WT_, WP = T8, T6
    A(f"s_lshr_b32 s{WT_}, s{WAVE}, 1\ns_and_b32 s{WP}, s{WAVE}, 1")
    A("v_and_b32 v6, 31, v1\nv_lshrrev_b32 v5, 5, v1")
    A("v_and_b32 v4, 0x13, v6")
    A("v_bfe_u32 v7, v6, 2, 1\nv_lshl_or_b32 v4, v7, 3, v4")
    A("v_bfe_u32 v7, v6, 3, 1\nv_lshl_or_b32 v4, v7, 2, v4")
    A(f"s_lshl_b32 s{T0}, s{TJ}, 6\ns_lshl_b32 s{T1}, s{WP}, 5\ns_add_u32 s{T0}, s{T0}, s{T1}")
    A(f"v_add_u32 v4, s{T0}, v4")
    A("v_lshlrev_b32 v7, 1, v4\nv_lshlrev_b32 v11, 4, v1")
    A("s_waitcnt lgkmcnt(0)")
    A(f"global_load_ushort v8, v7, {sp(LRE)}\nglobal_load_ushort v9, v7, {sp(LIM)}\nglobal_load_ushort v10, v7, {sp(LDT)}")
    nn = uid("nn")
    A(f"s_lshl_b32 s{T0}, s2, 3\ns_add_u32 s{T0}, s{T0}, s{WAVE}\ns_cmp_lg_u32 s{T0}, 1")
    A(f"s_cbranch_scc1 {nn}")
    A(f"s_load_dword s{T0}, {sp(WS)}, {WS_NONCE}")
    A(f"v_mov_b32 v16, 0\nv_and_b32 v17, 31, v1\nv_lshlrev_b32 v17, 7, v17\nv_add_u32 v17, {WS_CNT}, v17")
    A(f"global_store_dword v17, v16, {sp(WS)} sc1")
    A("s_waitcnt vmcnt(0) lgkmcnt(0)")
    A(f"s_add_u32 s{T0}, s{T0}, 1\ns_cmp_eq_u32 s{T0}, 0\ns_cselect_b32 s{T0}, 1, s{T0}")
    A(f"v_mov_b32 v17, s{T0}")
    A(f"s_mov_b64 exec, 1\nglobal_store_dword v16, v17, {sp(DBG)} sc1")
    A(f"global_store_dword v16, v17, {sp(WS)} offset:{WS_NONCE}\ns_mov_b64 exec, -1")
    A.label(nn)
    if CODEPF:
        pf = uid("pf")
        A(f"s_cmp_lg_u32 s{WAVE}, 0")
        A(f"s_cbranch_scc1 {pf}")
        A(f"s_lshr_b32 s{T0}, s2, 3\ns_lshl_b32 s{T0}, s{T0}, 11\nv_and_b32 v12, 15, v1\nv_lshl_add_u32 v12, v12, 7, s{T0}")
        A(f"v_min_u32 v12, L_{name}_end-{name}, v12")
        pc = uid("pc")
        A(f"s_getpc_b64 {sp(T0)}")
        A.label(pc)
        A(f"s_sub_u32 s{T0}, s{T0}, {pc}-{name}\ns_subb_u32 s{T1}, s{T1}, 0")
        A(f"global_load_dword v247, v12, {sp(T0)}")
        A.label(pf)
    A("v_bfe_u32 v7, v6, 1, 3\nv_xor_b32 v7, v7, v5\nv_lshlrev_b32 v7, 4, v7\nv_lshl_add_u32 v7, v6, 7, v7")
    A(f"s_lshl_b32 s{T0}, s{WT_}, 13\ns_lshl_b32 s{T1}, s{WP}, 13\ns_add_u32 s{T1}, s{T1}, 16384")
    for ks in range(4):
        A(f"v_xor_b32 v12, {ks << 5}, v7")
        A(f"v_add_u32 v{AD(0,0,ks)}, s{T0}, v12\nv_add_u32 v{AD(0,1,ks)}, s{T1}, v12")
        A(f"v_add_u32 v{AD(1,0,ks)}, 0x10000, v{AD(0,0,ks)}\nv_add_u32 v{AD(1,1,ks)}, 0x10000, v{AD(0,1,ks)}")
    for r in range(64, 128, 2):
        A(f"v_mov_b64 v[{r}:{r+1}], 0")
    A(f"v_mov_b32 v34, {L_SYNC}\nv_mov_b64 v[36:37], 0\nv_mov_b64 v[38:39], 0")
    A("s_mov_b64 exec, 1\nds_write_b128 v34, v[36:39]\nds_write_b128 v34, v[36:39] offset:16\ns_mov_b64 exec, -1")
    A("v_lshlrev_b32 v12, 4, v5\nv_sub_u32 v12, v6, v12\nv_mov_b32 v13, 0x3f80\nv_mov_b32 v14, 1.0")
    for c in range(8):
        A(f"v_cmp_eq_u32 vcc, {c}, v12\nv_cmp_eq_u32 {sp(T0)}, {c+8}, v12")
        A(f"v_cndmask_b32 v{248+c}, 0, v13, vcc\nv_cndmask_b32 v{248+c}, v{248+c}, v14, {sp(T0)}")
    srd(A, S0, WS, None, WS_EG, 0x40000)
    srd(A, S1, WS, None, WS_HT, 0x800000)
    A("s_waitcnt vmcnt(0)")
    A("v_lshlrev_b32 v8, 16, v8\nv_lshlrev_b32 v9, 16, v9\nv_lshlrev_b32 v10, 16, v10")
    A("v_mul_f32 v10, 0x3fb8aa3b, v10\nv_exp_f32 v10, v10")
    A("v_cvt_pk_bf16_f32 v10, v10, v10\nv_lshlrev_b32 v10, 16, v10")
    A("v_mul_f32 v12, v10, v8\nv_mul_f32 v13, v10, v9")
    A("v_mul_f32 v12, 0x3fb8aa3b, v12\nv_exp_f32 v12, v12")
    A("v_mul_f32 v13, 0.15915494, v13\nv_rndne_f32 v14, v13\nv_sub_f32 v13, v13, v14")
    A("v_cos_f32 v14, v13\nv_sin_f32 v15, v13")
    A(f"v_mul_f32 v{LAM}, v12, v14\nv_mul_f32 v{LAM+1}, v12, v15")
    A(f"v_add_f32 v12, -1.0, v{LAM}")
    A("v_mul_f32 v13, v8, v8\nv_fma_f32 v13, v9, v9, v13\nv_rcp_f32 v13, v13")
    A("v_add_f32 v13, v13, v13")
    A(f"v_mul_f32 v14, v12, v8\nv_fma_f32 v14, v{LAM+1}, v9, v14\nv_mul_f32 v{KC}, v14, v13")
    A(f"v_mul_f32 v14, v{LAM+1}, v8\nv_fma_f32 v14, -v12, v9, v14\nv_mul_f32 v{KC+1}, v14, v13")
    L32 = 20
    cmul_sq(A, L16, LAM, 12)
    for _ in range(3):
        cmul_sq(A, L16, L16, 12)
    cmul_sq(A, L32, L16, 12)
    cmul_sq(A, L128, L32, 12)
    cmul_sq(A, L128, L128, 12)
    cmul_sq(A, L256, L128, 12)

    def reads(k, ks, which):
        slot = k % NS
        st, off = slot >> 1, (slot & 1)*32768
        X = ks & 1
        for f in which:
            op = 0 if f in (0, 3) else 1
            hi = 4096 if f in (2, 3) else 0
            A(f"ds_read_b128 {v(FR(X, f), 4)}, v{AD(st, op, ks)} offset:{off + hi}")

    def mfma(T_, c, X):
        a = FR(X, 0 if T_ == 0 else 3)
        b = FR(X, 1 if c == 0 else 2)
        A(f"{MF} {v(ACC(T_,c),16)}, {v(a,4)}, {v(b,4)}, {v(ACC(T_,c),16)}")
    A("s_waitcnt lgkmcnt(0)\ns_barrier")
    reads(0, 0, [0, 1, 2, 3])
    for k in range(16):
        for ks in range(4):
            X = ks & 1
            nk, nks = (k, ks+1) if ks < 3 else (k+1, 0)
            have = nk < 16
            if ks == 3:
                A("s_waitcnt lgkmcnt(0)\ns_barrier")
            else:
                A("s_waitcnt lgkmcnt(2)")
            if k == 12 and ks == 0:
                A("v_mov_b32 v12, 0")
                A(f"global_load_dword v13, v12, {sp(DBG)} sc1")
            mfma(0, 0, X)
            if have:
                reads(nk, nks, [0, 1])
            if ks != 3:
                A("s_waitcnt lgkmcnt(3)")
            mfma(0, 1, X)
            if have:
                reads(nk, nks, [2, 3])
            if ks != 3:
                A("s_waitcnt lgkmcnt(4)")
            mfma(1, 0, X)
            mfma(1, 1, X)
    mark(A, 1)
    U = lambda c, idx: ACC(idx >> 3, c) + 2*(idx & 7)
    bc_a = "op_sel_hi:[0,1,1]"
    bc_b = "op_sel:[1,0,0]"
    TT = 40

    def pk_step(L, dr, di, pr, pi, ur, ui):
        A(f"v_pk_fma_f32 {v(TT,2)}, {v(L,2)}, {v(pr,2)}, {v(ur,2)} {bc_a}")
        A(f"v_pk_fma_f32 {v(TT+2,2)}, {v(L,2)}, {v(pi,2)}, {v(ui,2)} {bc_a}")
        A(f"v_pk_fma_f32 {v(dr,2)}, {v(L,2)}, {v(pi,2)}, {v(TT,2)} {bc_b} {N0}")
        A(f"v_pk_fma_f32 {v(di,2)}, {v(L,2)}, {v(pr,2)}, {v(TT+2,2)} {bc_b}")
    A(f"s_lshl_b32 s{T0}, s{WP}, 10\ns_add_u32 s{T0}, s{T0}, {L_XCH}\ns_lshl_b32 s{T1}, s{WT_}, 4")
    A(f"v_lshl_add_u32 v14, v6, 5, s{T0}")
    A(f"v_lshl_add_u32 v15, v5, 3, v14\nv_add_u32 v15, s{T1}, v15")
    for idx in range(1, 16):
        pk_step(LAM, U(0, idx), U(1, idx), U(0, idx-1), U(1, idx-1), U(0, idx), U(1, idx))
    EA = (U(0, 15), U(1, 15))
    horner(A, 32, 33, L16, EA[0], EA[1], EA[0]+1, EA[1]+1, TT)
    A("ds_write_b64 v15, v[32:33]")
    A(f"s_sub_u32 s{T0}, s{TI}, 1\ns_lshl_b32 s{T0}, s{T0}, 14")
    A("v_lshlrev_b32 v16, 4, v4\nv_lshlrev_b32 v17, 14, v5\nv_sub_u32 v17, v16, v17")
    A(f"v_add_u32 v128, s{T0}, v17")
    A(f"s_lshl_b32 s{T0}, s{TI}, 14\nv_add_u32 v16, s{T0}, v16")
    A("v_lshlrev_b32 v17, 30, v5\nv_or_b32 v16, v16, v17")
    A("s_waitcnt lgkmcnt(0)\ns_barrier")
    SG = 144
    A(f"ds_read_b128 {v(SG,4)}, v14\nds_read_b128 {v(SG+4,4)}, v14 offset:16")
    nl, ng = uid("n"), uid("ng")
    A.label(nl)
    A("s_waitcnt vmcnt(0)")
    A(f"v_readfirstlane_b32 s{NONCE}, v13")
    A(f"s_cmp_lg_u32 s{NONCE}, 0")
    A(f"s_cbranch_scc1 {ng}")
    A(f"global_load_dword v13, v12, {sp(DBG)} sc1")
    A(f"s_branch {nl}")
    A.label(ng)
    P = 44
    A(f"v_mov_b32 v{P+2}, s{NONCE}\nv_mov_b32 v{P+3}, s{NONCE}")
    A(f"s_getreg_b32 s{T0}, hwreg(HW_REG_XCC_ID, 0, 4)\ns_lshl_b32 s{T1}, s{NONCE}, 4\ns_or_b32 s{LOCAL}, s{T0}, s{T1}\nv_mov_b32 v60, s{LOCAL}")
    A(f"s_lshr_b32 s{PG}, s{TJ}, 3")
    A(f"s_lshl_b32 s{T0}, s{TI}, 11\ns_add_u32 s{T0}, s{T0}, {FLG_X}\ns_lshl_b32 s{T1}, s{TJ}, 7\ns_add_u32 s{T1}, s{T1}, s{T0}\nv_mov_b32 v61, s{T1}")
    A(f"s_lshl_b32 s{T1}, s{PG}, 10\ns_add_u32 s{T0}, s{T0}, s{T1}\nv_and_b32 v62, 7, v1\nv_lshl_add_u32 v62, v62, 7, s{T0}")
    A("s_waitcnt lgkmcnt(0)")
    horner(A, 48, 49, L32, SG, SG+1, SG+2, SG+3, TT)
    horner(A, 50, 51, L32, 48, 49, SG+4, SG+5, TT)
    horner(A, P, P+1, L32, 50, 51, SG+6, SG+7, TT)
    np_ = uid("np")
    A(f"s_cmp_lg_u32 s{WT_}, 0")
    A(f"s_cbranch_scc1 {np_}")
    A(f"buffer_store_dwordx4 {v(P,4)}, v16, {r4(S0)}, 0 offen sc1")
    A(f"s_cmp_lg_u32 s{WP}, 0")
    A(f"s_cbranch_scc1 {np_}")
    A(f"s_mov_b64 exec, 1\nglobal_store_dword v61, v60, {sp(WS)} sc1\ns_mov_b64 exec, -1")
    A.label(np_)
    mark(A, 2)
    LB = 160
    A("v_mov_b32 v17, 0x40000000")
    for u in range(1, 8):
        A(f"v_subrev_u32 v{128+u}, {u*32768}, v128")
    for u in range(8):
        A(f"v_cmp_le_i32 vcc, 0, v{128+u}")
        A(f"v_cndmask_b32 v{136+u}, 0, v{P+2}, vcc")
        A(f"v_cndmask_b32 v{128+u}, v17, v{128+u}, vcc")
    def lbloads():
        for u in range(8):
            A(f"buffer_load_dwordx4 {v(LB+4*u,4)}, v{128+u}, {r4(S0)}, 0 offen sc1")
        A(f"global_load_dword v63, v62, {sp(WS)} sc1")
    A(f"s_lshl_b32 s{T0}, s{TI}, 1\ns_add_u32 s{T0}, s{T0}, s{WT_}\ns_lshl_b32 s{T0}, s{T0}, 12\ns_add_u32 s{T0}, s{T0}, {FLG_H}")
    A(f"s_lshl_b32 s{T1}, s{PG}, 11\ns_add_u32 s{T1}, s{T1}, s{T0}\nv_and_b32 v18, 15, v1\nv_lshl_add_u32 v18, v18, 7, s{T1}")
    A(f"s_lshl_b32 s{T1}, s{TJ}, 8\ns_add_u32 s{T0}, s{T0}, s{T1}\ns_lshl_b32 s{T1}, s{WP}, 7\ns_add_u32 s{T0}, s{T0}, s{T1}\nv_mov_b32 v19, s{T0}")
    if FTOUCH:
        A(f"global_load_dword v246, v18, {sp(WS)} sc1")
    if LBAT == 0:
        lbloads()
    O = 52
    PW = lambda idx: 208 + 2*idx
    A(f"v_mul_f32 v{O}, v{KC+1}, v{LAM+1}\nv_mul_f32 v{O+1}, v{KC+1}, v{LAM}")
    A(f"v_fma_f32 v{PW(0)}, v{KC}, v{LAM}, -v{O}\nv_fma_f32 v{PW(0)+1}, v{KC}, v{LAM+1}, v{O+1}")
    for idx in range(16):
        d = (U(0, idx), U(1, idx))
        A(f"v_pk_mul_f32 {v(O,2)}, {v(KC,2)}, {v(d[0],2)} op_sel_hi:[0,1]")
        A(f"v_pk_mul_f32 {v(O+2,2)}, {v(KC,2)}, {v(d[1],2)} op_sel_hi:[0,1] neg_lo:[1,0] neg_hi:[1,0]")
        if idx == 15:
            A(f"v_mov_b32 v56, v{d[0]}\nv_mov_b32 v57, v{d[1]}")
        if idx < 15:
            A(f"v_mul_f32 v58, v{PW(idx)+1}, v{LAM+1}\nv_mul_f32 v59, v{PW(idx)+1}, v{LAM}")
        A(f"v_pk_fma_f32 {v(O+2,2)}, {v(KC,2)}, {v(d[0],2)}, {v(O+2,2)} {bc_b} {N0}")
        A(f"v_pk_fma_f32 {v(d[0],2)}, {v(KC,2)}, {v(d[1],2)}, {v(O,2)} {bc_b} {N0}")
        A(f"v_mov_b64 {v(d[1],2)}, {v(O+2,2)}")
        if idx < 15:
            A(f"v_fma_f32 v{PW(idx+1)}, v{PW(idx)}, v{LAM}, -v58\nv_fma_f32 v{PW(idx+1)+1}, v{PW(idx)}, v{LAM+1}, v59")
        if idx + 1 == LBAT:
            lbloads()
    A(f"s_mov_b32 s{T9}, 0")
    pl, pd = uid("poll"), uid("polled")
    A.label(pl)
    A(f"s_mov_b64 {sp(T0)}, 0")
    for u in range(8):
        A(f"s_waitcnt vmcnt({8-u})")
        A(f"v_cmp_ne_u32 vcc, v{LB+4*u+2}, v{136+u}")
        A(f"s_or_b64 {sp(T0)}, {sp(T0)}, vcc")
        A(f"v_cmp_ne_u32 vcc, v{LB+4*u+3}, v{136+u}")
        A(f"s_or_b64 {sp(T0)}, {sp(T0)}, vcc")
    A(f"s_waitcnt vmcnt(0)\nv_xor_b32 v63, v60, v63\nv_cmp_lt_u32 vcc, 15, v63")
    A(f"s_or_b64 {sp(T0)}, {sp(T0)}, vcc")
    A(f"s_add_u32 s{T9}, s{T9}, 1")
    A(f"s_cmp_eq_u64 {sp(T0)}, 0")
    A(f"s_cbranch_scc1 {pd}")
    A(f"s_cmp_ge_u32 s{T9}, {SPIN_MAX}")
    A(f"s_cbranch_scc1 {pd}")
    lbloads()
    A(f"s_branch {pl}")
    A.label(pd)
    A(f"v_cmp_ne_u32 vcc, 0, v63\ns_cmp_eq_u64 vcc, 0\ns_cselect_b32 s{LOCAL}, {0 if FORCE_REMOTE else 1}, 0")
    mark(A, 3)
    vm = VmCounter(A)
    if CTOUCH:
        ct = uid("ct")
        A(f"s_cmp_lt_u32 s{WAVE}, 2\ns_cbranch_scc1 {ct}")
        A(f"s_lshl_b32 s{T0}, s{PG}, 10\ns_bfe_u32 s{T1}, s2, 0x20001\ns_lshl_b32 s{T1}, s{T1}, 19\ns_add_u32 s{T0}, s{T0}, s{T1}")
        A(f"s_lshr_b32 s{T1}, s2, 3\ns_lshl_b32 s{T1}, s{T1}, 14\ns_add_u32 s{T0}, s{T0}, s{T1}")
        A(f"v_lshrrev_b32 v8, 3, v1\nv_lshlrev_b32 v8, 11, v8\nv_and_b32 v9, 7, v1\nv_lshl_add_u32 v8, v9, 7, v8\nv_add_u32 v8, s{T0}, v8")
        A(f"s_cmp_eq_u32 s{WP}, 0\ns_cselect_b32 s{T0}, s{CRE}, s{CIM}\ns_cselect_b32 s{T1}, s{CRE+1}, s{CIM+1}")
        A(f"global_load_dword v246, v8, {sp(T0)}")
        A.label(ct)
    H0, H1 = LB + 28, 48
    cur = (H0, H0+1)
    for u in range(6, -1, -1):
        d = (48, 49) if cur[0] == H0 else (H0, H0+1)
        horner(A, d[0], d[1], L256, cur[0], cur[1], LB+4*u, LB+4*u+1, TT)
        cur = d
    assert cur == (48, 49)
    A(f"v_mov_b32 v50, v48\nv_mov_b32 v51, v49")
    A(f"v_permlane32_swap_b32 v48, v50\nv_permlane32_swap_b32 v49, v51")
    PS = 192
    horner(A, PS, PS+1, L128, 50, 51, 48, 49, TT)
    for u in range(1, 4):
        horner(A, PS+2*u, PS+2*u+1, L32, PS+2*u-2, PS+2*u-1, SG+2*u-2, SG+2*u-1, TT)
    w0 = uid("wt0")
    A(f"s_cmp_eq_u32 s{WT_}, 0")
    A(f"s_cbranch_scc1 {w0}")
    A(f"v_mov_b64 {v(PS,2)}, {v(PS+4,2)}\nv_mov_b64 {v(PS+2,2)}, {v(PS+6,2)}")
    A.label(w0)
    A("v_cmp_eq_u32 vcc, 1, v5")
    G = 48
    A(f"v_cndmask_b32 v{G}, v{PS}, v{PS+2}, vcc")
    A(f"v_cndmask_b32 v{G+2}, v{PS+1}, v{PS+3}, vcc")
    horner(A, G+1, G+3, L16, G, G+2, 56, 57, TT)
    PK = lambda c, idx: 128 + 16*c + idx
    D = lambda c, X: 160 + 16*c if X == 0 else (192 if c == 0 else 32)
    A(f"s_lshl_b32 s{T0}, s{TI}, 1\ns_add_u32 s{T9}, s{T0}, s{WT_}\ns_lshl_b32 s{T0}, s{T9}, 18")
    A(f"s_lshl_b32 s{T1}, s{TJ}, 13\ns_add_u32 s{T0}, s{T0}, s{T1}\ns_lshl_b32 s{T1}, s{WP}, 11\ns_add_u32 s{T0}, s{T0}, s{T1}")

    def fix(idx):
        d = (U(0, idx), U(1, idx))
        pw = v(PW(idx), 2)
        A(f"v_pk_fma_f32 {v(d[0],2)}, {pw}, {v(G,2)}, {v(d[0],2)} {bc_a}")
        A(f"v_pk_fma_f32 {v(d[1],2)}, {pw}, {v(G+2,2)}, {v(d[1],2)} {bc_a} {N0}")
        A(f"v_pk_fma_f32 {v(d[0],2)}, {pw}, {v(G+2,2)}, {v(d[0],2)} {bc_b} {N0}")
        A(f"v_pk_fma_f32 {v(d[1],2)}, {pw}, {v(G,2)}, {v(d[1],2)} {bc_b} {N0}")
        A(f"v_cvt_pk_bf16_f32 v{PK(0,idx)}, v{d[0]}, v{d[0]+1}")
        A(f"v_cvt_pk_bf16_f32 v{PK(1,idx)}, v{d[1]}, v{d[1]+1}")

    def tr(X):
        for c in range(2):
            A(f"{MF} {v(D(c,X),16)}, {v(PK(c,8*X),4)}, v[248:251], 0")
            A(f"{MF} {v(D(c,X),16)}, {v(PK(c,8*X+4),4)}, v[252:255], {v(D(c,X),16)}")

    def st(X, c):
        A(f"s_add_u32 s{T1}, s{T0}, {X*131072 + c*4096}")
        q = 64 + (X*2 + c)*8
        for jj in range(8):
            A(f"v_cvt_pk_bf16_f32 v{q+jj}, v{D(c,X)+2*jj}, v{D(c,X)+2*jj+1}")
        A(f"buffer_store_dwordx4 {v(q,4)}, v11, {r4(S1)}, s{T1} offen sc1")
        A(f"buffer_store_dwordx4 {v(q+4,4)}, v11, {r4(S1)}, s{T1} offen offset:1024 sc1")
    for idx in range(8):
        fix(idx)
    tr(0)
    for idx in range(8, 12):
        fix(idx)
    st(0, 0)
    st(0, 1)
    for idx in range(12, 16):
        fix(idx)
    tr(1)
    st(1, 0)
    st(1, 1)
    mark(A, 4)
    M0B, RH, RCc, SH, SC = T7, T5, T4, T3, T2
    ACC2 = lambda nt: 32 + 16*nt
    CF = lambda X, nt: 96 + 16*X + 4*nt
    XR, CV = 128, 144
    HR = lambda s_: 148 + 4*(s_ % HD)
    for ks in range(4):
        A(f"v_xor_b32 v{20+ks}, {ks << 5}, v7")
        A(f"v_add_u32 v{24+ks}, 0x10000, v{20+ks}")
    A(f"s_lshl_b32 s{T0}, s{WP}, 3")
    A(f"v_lshl_add_u32 v17, v5, 2, s{T0}")
    A("v_lshlrev_b32 v28, 11, v17\nv_lshl_add_u32 v28, v6, 2, v28")
    A("v_lshlrev_b32 v29, 13, v17\nv_lshl_add_u32 v29, v6, 3, v29")
    A("v_lshlrev_b32 v30, 2, v6\nv_mov_b32 v2, v11")
    A(f"v_mov_b32 v12, {L_SYNC}\ns_lshl_b32 s{T0}, s{WAVE}, 2\nv_add_u32 v13, s{T0}, v12")
    A(f"s_xor_b32 s{T0}, s{WT_}, s{PG}\ns_xor_b32 s{T0}, s{T0}, 1\ns_lshl_b32 s{T0}, s{T0}, 6\ns_add_u32 s{T0}, s{T0}, s{WP}")
    A(f"v_lshrrev_b32 v8, 3, v1\nv_lshl_add_u32 v8, v8, 1, s{T0}\nv_lshlrev_b32 v8, 11, v8")
    A("v_and_b32 v9, 7, v1\nv_lshrrev_b32 v10, 4, v1\nv_xor_b32 v9, v9, v10\nv_lshlrev_b32 v9, 4, v9\nv_xor_b32 v10, 64, v9")
    for u in range(4):
        A(f"v_add_u32 v{CV+u}, v8, v{9 + (u & 1)}")
        if u:
            A(f"v_add_u32 v{CV+u}, {u*(16*2048 - 1024)}, v{CV+u}")
    A(f"s_and_b32 s{T0}, s{TJ}, 7\ns_lshl_b32 s{T0}, s{T0}, 18\ns_lshl_b32 s{T1}, s{PG}, 10\ns_add_u32 s{T0}, s{T0}, s{T1}")
    srd(A, S2, CRE, T0, 0, 0x40000, T1)
    srd(A, S3, CIM, T0, 0, 0x40000, T1)
    A(f"s_lshl_b32 s{M0B}, s{WAVE}, 12")
    A(f"s_lshr_b32 s{RCc}, s{TI}, 2\ns_mul_i32 s{RCc}, s{RCc}, {XO2*128}")
    A(f"s_and_b32 s{T0}, s{TI}, {NP2-1}\ns_mul_i32 s{T0}, s{T0}, {1024//NP2}\ns_add_u32 s{RCc}, s{RCc}, s{T0}")
    A(f"s_lshl_b32 s{RH}, s{RCc}, 6")
    A(f"s_and_b32 s{T1}, s{TJ}, 7\ns_lshl_b32 s{T1}, s{T1}, 1\ns_add_u32 s{T1}, s{T1}, s{PG}\ns_lshl_b32 s{T1}, s{T1}, 7")
    A(f"s_lshl_b32 s{T0}, s{T9}, 17\ns_add_u32 s{T0}, s{T0}, s{T1}")
    srd(A, S4, BX, T0, 0, 0x20000, T1)
    A(f"s_add_u32 s{DSK}, s{DSK}, s{T1}\ns_addc_u32 s{DSK+1}, s{DSK+1}, 0")
    A(f"s_lshl_b32 s{T1}, s{T1}, 1\ns_add_u32 s{T1}, s{T1}, 4096\ns_lshl_b32 s{T0}, s{T9}, 19\ns_add_u32 s{T0}, s{T0}, s{T1}")
    A(f"s_add_u32 s{OUT}, s{OUT}, s{T0}\ns_addc_u32 s{OUT+1}, s{OUT+1}, 0\ns_sub_u32 s{LDT}, 0x80000, s{T1}")
    A(f"s_lshl_b32 s{T0}, s{TI}, 2\ns_add_u32 s{T0}, s{T0}, s{WAVE}\ns_lshl_b32 s{T0}, s{T0}, 17\ns_lshl_b32 s{T1}, s{PG}, 16\ns_add_u32 s{T0}, s{T0}, s{T1}")
    srd(A, S0, WS, T0, WS_HT, 0x10000)

    def cdma(g, us):
        for u in us:
            if u == 0:
                A(f"s_add_u32 m0, s{M0B}, {(g % R)*16384}")
                if g % 2 == 0:
                    A(f"s_add_u32 s{SC}, s{RCc}, {(g >> 1)*128}\ns_and_b32 s{SC}, s{SC}, 0x3ff")
            vm.op(f"buffer_load_dwordx4 v{CV+u}, {r4(S2 if g % 2 == 0 else S3)}, s{SC} offen offset:{u*1024}{NTC} lds", ("c", g))
    for g in range(CPRO1):
        cdma(g, range(4))
    A(f"v_mov_b32 v15, s{NONCE}")
    a, b = uid("rs"), uid("rd")
    A(f"s_waitcnt vmcnt({4*CPRO1})\ns_mov_b64 exec, 1\ns_cmp_eq_u32 s{LOCAL}, 0\ns_cbranch_scc1 {a}")
    A(f"global_store_dword v19, v15, {sp(WS)}\ns_branch {b}")
    A.label(a)
    A(f"global_store_dword v19, v15, {sp(WS)} sc1")
    A.label(b)
    A("s_mov_b64 exec, -1")
    for g in range(CPRO1, CPRO2):
        cdma(g, range(4))

    def arrive(b):
        A(f"v_mov_b32 v14, {b+1}")
        A("s_mov_b64 exec, 1\nds_write_b32 v13, v14\ns_mov_b64 exec, -1")

    def check(b):
        l, d = uid("ck"), uid("ckd")
        A.label(l)
        A("v_min3_u32 v15, v8, v9, v10\nv_min_u32 v15, v15, v11")
        A(f"v_readfirstlane_b32 s{T0}, v15")
        A(f"s_cmp_ge_u32 s{T0}, {b+1}")
        A(f"s_cbranch_scc1 {d}")
        A("ds_read_b128 v[8:11], v12\ns_waitcnt lgkmcnt(0)")
        A(f"s_branch {l}")
        A.label(d)
    mark(A, 5)
    wait_cnt(A, 18, 8, SLP_H)
    vm.issued = []
    mark(A, 6)
    NK = 64

    def hload(s_):
        if s_ % 4 == 0:
            A(f"s_add_u32 s{SH}, s{RH}, {(s_ >> 2)*4096}\ns_and_b32 s{SH}, s{SH}, 0xffff")
        vm.op(f"buffer_load_dwordx4 {v(HR(s_),4)}, v2, {r4(S0)}, s{SH} offen offset:{(s_ & 3)*1024} sc1", ("h", s_))

    def rd2(s_, nts):
        g, ks = s_ >> 2, s_ & 3
        slot = g % R
        base = 20 if slot < 4 else 24
        for nt in nts:
            A(f"ds_read_b128 {v(CF(s_ & 1, nt),4)}, v{base+ks} offset:{(slot & 3)*16384 + nt*4096}")
    cg = CPRO2
    if cg >= 2:
        arrive(0)
    for s_ in range(HD):
        if s_ % 4 == 0 and cg < CD:
            cdma(cg, range(4))
            cg += 1
        hload(s_)
    while cg < CD:
        cdma(cg, range(4))
        cg += 1
    if CPRO2 < 2:
        vm.wait_for(("c", 1))
        arrive(0)
    A("ds_read_b128 v[8:11], v12\ns_waitcnt lgkmcnt(0)")
    check(0)
    rd2(0, range(4))
    have_c = lambda g: any(t == ("c", g) for t in vm.issued)

    def mf(s_, nt):
        c = "0" if s_ == 0 else v(ACC2(nt), 16)
        A(f"{MF} {v(ACC2(nt),16)}, {v(HR(s_),4)}, {v(CF(s_ & 1, nt),4)}, {c}")
    for s_ in range(NK):
        g, ks = s_ >> 2, s_ & 3
        nxt = s_ + 1
        more = nxt < NK
        wv = vm.wait_for(("h", s_), emit=False)
        arr = (s_ + 4) % 8 == 0 and s_ + 4 < NK
        if arr:
            gl = ((s_ + 4) >> 2) + 1
            if have_c(gl):
                wv = min(wv, vm.wait_for(("c", gl), emit=False))
        newgrp = more and nxt % 8 == 0
        fl = 1 if (s_ + 1) % 8 == 0 and more else 0
        if newgrp or not more:
            A(f"s_waitcnt vmcnt({wv}) lgkmcnt(0)")
            if newgrp:
                check(nxt >> 3)
                if nxt == 32:
                    mark(A, 7)
        else:
            A(f"s_waitcnt vmcnt({wv}) lgkmcnt(3)")
        extra = 0
        if arr:
            arrive((s_ + 4) >> 3)
            extra = 1
        full = newgrp or not more
        mf(s_, 0)
        if more:
            rd2(nxt, [0, 1])
        if not full:
            A(f"s_waitcnt lgkmcnt({4 + extra})")
        mf(s_, 1)
        if more:
            rd2(nxt, [2, 3])
        if not full:
            A(f"s_waitcnt lgkmcnt({5 + extra})")
        mf(s_, 2)
        if g + CD < NK//4:
            cdma(g + CD, [ks])
        if not full:
            A(f"s_waitcnt lgkmcnt({4 + extra})")
        mf(s_, 3)
        if s_ + HD < NK:
            hload(s_ + HD)
        if (s_ + 2) % 8 == 0 and s_ + 2 < NK:
            A("ds_read_b128 v[8:11], v12")
        if s_ == NK - 18:
            vm.op(f"global_load_dword v31, v30, {sp(DSK)}", "dsk")
        if NK - 17 <= s_ < NK - 1:
            e = s_ - (NK - 17)
            q, r = e >> 2, e & 3
            A(f"s_mov_b32 s{T0}, {q*32768 + (r >> 1)*4096}")
            vm.op(f"buffer_load_dword v{XR+e}, v28, {r4(S4)}, s{T0} offen offset:{(r & 1)*2048}", ("x", e))
    mark(A, 8)
    TG = T0
    A(f"s_mul_i32 s{TG}, s{NONCE}, 0x9e3779b1\ns_and_b32 s{TG}, s{TG}, 0xbfff0000\ns_or_b32 s{TG}, s{TG}, 0x20000000")
    A(f"s_lshl_b32 s{T4}, s{TI}, 4\ns_add_u32 s{T4}, s{T4}, s{TJ}\ns_lshl_b32 s{T4}, s{T4}, 2\ns_add_u32 s{T4}, s{T4}, s{WAVE}\ns_lshl_b32 s{T4}, s{T4}, 13")
    srd(A, S2, WS, T4, WS_XB, 0x2000)
    A(f"s_xor_b32 s{T4}, s{T4}, {8 << 15}")
    srd(A, S3, WS, T4, WS_XB, 0x2000)
    A(f"s_movk_i32 s{T4}, 0x1000")
    val = lambda n: ACC2(n & 1) + (n >> 1)
    TX, RX = 96, 180
    for gq in range(5):
        for c in range(4):
            n = 7*gq + 2*c
            lo = f"v{val(min(n, 31))}"
            hi = f"s{TG}" if c == 3 else f"v{val(min(n+1, 31))}"
            A(f"v_cvt_pk_bf16_f32 v{TX+4*gq+c}, {lo}, {hi}")
        A(f"buffer_store_dwordx4 {v(TX+4*gq,4)}, v2, {r4(S2)}, {'0' if gq < 4 else f's{T4}'} offen offset:{(gq & 3)*1024} sc1")

    def rx():
        for gq in range(5):
            A(f"buffer_load_dwordx4 {v(RX+4*gq,4)}, v2, {r4(S3)}, {'0' if gq < 4 else f's{T4}'} offen offset:{(gq & 3)*1024} sc1")
    if E_("XM", 0):
        mark(A, 3)
    A("s_waitcnt vmcnt(5)")
    if E_("XM", 0):
        mark(A, 5)
    A("v_lshlrev_b32 v8, 16, v31\nv_and_b32 v9, 0xffff0000, v31")
    YO = lambda e: 148 + 2*e
    for e in range(16):
        t = YO(e)
        A(f"v_lshlrev_b32 v{t}, 16, v{XR+e}\nv_and_b32 v{t+1}, 0xffff0000, v{XR+e}")
        A(f"v_pk_mul_f32 {v(t,2)}, {v(t,2)}, v[8:9]")
        A(f"v_cvt_pk_bf16_f32 v10, v{t}, v{t+1}")
        A(f"v_lshlrev_b32 v{t}, 16, v10\nv_and_b32 v{t+1}, 0xffff0000, v10")
        A(f"v_add_f32 v{t}, v{t}, v{ACC2(2)+e}\nv_add_f32 v{t+1}, v{t+1}, v{ACC2(3)+e}")
    A(f"s_mov_b32 s{S1}, s{OUT}\ns_mov_b32 s{S1+1}, s{OUT+1}\ns_mov_b32 s{S1+2}, s{LDT}\ns_mov_b32 s{S1+3}, 0x20000")
    xl, xd = uid("xl"), uid("xd")
    A(f"s_mov_b32 s{CNT}, 0")
    A(f"s_waitcnt vmcnt({E_('XW', 0)})")
    if E_("XM", 0):
        mark(A, 6)
    rx()
    A.label(xl)
    A("v_mov_b32 v10, 0")
    for gq in range(5):
        A(f"s_waitcnt vmcnt({4-gq})")
        A(f"v_bitop3_b32 v10, v10, v{RX+4*gq+3}, s{TG} bitop3:0xf6")
    A("v_cmp_lt_u32 vcc, 0xffff, v10")
    A(f"s_cbranch_vccz {xd}")
    A(f"s_add_u32 s{CNT}, s{CNT}, 1\ns_cmp_ge_u32 s{CNT}, {SPIN_MAX}")
    A(f"s_cbranch_scc1 {xd}")
    rx()
    A(f"s_branch {xl}")
    A.label(xd)
    if STAMP:
        A(f"s_add_u32 s74, s70, s{CNT}\ns_lshl_b32 s{CNT}, s{LOCAL}, 8\ns_add_u32 s74, s74, s{CNT}")
        mark(A, 4)
    for e in range(16):
        q, r = e >> 2, e & 3
        t = YO(e)
        for nt in range(2):
            n = 2*e + nt
            src = RX + 4*(n // 7) + (n % 7)//2
            if (n % 7) % 2 == 0:
                A(f"v_lshlrev_b32 v{10+nt}, 16, v{src}")
            else:
                A(f"v_and_b32 v{10+nt}, 0xffff0000, v{src}")
        A(f"v_pk_add_f32 {v(t,2)}, {v(t,2)}, v[10:11]")
        A(f"s_mov_b32 s{T4}, {(16*q + r)*8192}")
        A(f"buffer_store_dwordx2 {v(t,2)}, v29, {r4(S1)}, s{T4} offen{OST}")
    stamp_end(A, kidx, WAVE)


def gen_fused(A, name, kidx):
    A(f".globl {name}\n.p2align 8\n.type {name},@function")
    A.label(name)
    A("s_cmp_ge_u32 s2, 256")
    A(f"s_cbranch_scc1 L_{name}_end")
    A("s_load_dwordx16 s[4:19], s[0:1], 0")
    A("s_load_dwordx8 s[20:27], s[0:1], 64")
    A("s_load_dwordx4 s[28:31], s[0:1], 96")
    A("s_load_dwordx2 s[32:33], s[0:1], 112")
    stamp_begin(A)
    A("v_lshrrev_b32 v2, 6, v0\nv_and_b32 v1, 63, v0")
    A(f"v_readfirstlane_b32 s{WAVE}, v2")
    A(f"s_and_b32 s{T0}, s2, 7\ns_lshr_b32 s{T1}, s2, 3")
    A(f"s_lshr_b32 s{TI}, s{T0}, 1\ns_lshl_b32 s{TI}, s{TI}, 2\ns_lshr_b32 s{T2}, s{T1}, 3\ns_add_u32 s{TI}, s{TI}, s{T2}")
    A(f"s_and_b32 s{TJ}, s{T0}, 1\ns_lshl_b32 s{TJ}, s{TJ}, 3\ns_and_b32 s{T2}, s{T1}, 7\ns_add_u32 s{TJ}, s{TJ}, s{T2}")
    A(f"s_cmp_ge_u32 s{WAVE}, 4")
    A(f"s_cbranch_scc0 L_{name}_gemm")
    loader(A, name, kidx)
    A.label(f"L_{name}_gemm")
    gemm_waves(A, name, kidx)
    A.label(f"L_{name}_end")
    A("s_endpgm")
    return kdesc(name, 256)
```

```python
import os, struct, math
import numpy as np
STAMP = int(os.environ.get("STAMP", "0"))
WS_NONCE = 0
WS_EG = 0x10000
WS_HT = 0x100000
WS_Z1 = 0x1000000
WS_Z3 = 0x1400000
WS_WT = 0x1800000
WS_XB = 0x2000000
WS_STAMP = 0x2800000
SPIN_MAX = 200000
TBL_PERM = 0
TBL_F = 2048
TBL_T = TBL_F + 8192
TBL_TT = TBL_T + 8192
TBL_END = TBL_TT + 8192

NMARK = 10
DIAGC = int(os.environ.get('DIAGC', '0'))
TM = 's_memtime' if DIAGC else 's_memrealtime'
def stamp_begin(A):
    if STAMP:
        A("s_memrealtime s[96:97]")
        A("s_memtime s[70:71]")
        for i in range(1, NMARK):
            A(f"s_mov_b64 s[{70+2*i}:{71+2*i}], 0")

def mark(A, i, wait=True):
    if STAMP == 3:
        if i == int(os.environ.get("DIAGM", "0")):
            A(f"{TM} s[72:73]\ns_waitcnt lgkmcnt(0)")
    elif STAMP:
        A(f"s_memtime s[{70+2*i}:{71+2*i}]")
        if wait:
            A("s_waitcnt lgkmcnt(0)")

def stamp_end(A, kidx, swave):
    if STAMP == 3:
        import random
        lab = f"L_se{random.randrange(1 << 30)}"
        m, k = int(os.environ.get("DIAGM", "0")), int(os.environ.get("DIAGK", "6000"))
        if m == 9:
            A(f"s_waitcnt vmcnt(0)\n{TM} s[72:73]")
        A(f"s_waitcnt lgkmcnt(0)\ns_lshl_b32 s93, s2, 3\ns_add_u32 s93, s93, s{swave}\ns_cmp_lg_u32 s93, {int(os.environ.get('DBGW', '800'))}\ns_cbranch_scc1 {lab}")
        if m and DIAGC:
            A(f"s_sub_u32 s93, s72, s70\ns_mul_i32 s93, s93, {k}\ns_lshr_b32 s93, s93, 6\ns_min_u32 s93, s93, 100000")
        elif m:
            A(f"s_sub_u32 s93, s72, s96\ns_mul_i32 s93, s93, {k}\ns_min_u32 s93, s93, 100000")
        else:
            A(f"s_mov_b32 s93, {k}")
        A.label(lab + "x")
        A(f"s_memrealtime s[98:99]\ns_waitcnt lgkmcnt(0)\ns_sub_u32 s98, s98, s96\ns_cmp_lt_u32 s98, s93\ns_cbranch_scc1 {lab}x")
        A.label(lab)
    elif STAMP == 2:
        import random
        lab = f"L_se{random.randrange(1 << 30)}"
        A("s_waitcnt vmcnt(0) lgkmcnt(0)")
        A("s_memrealtime s[98:99]")
        A(f"s_memtime s[{70+2*(NMARK-1)}:{71+2*(NMARK-1)}]")
        A("s_load_dwordx2 s[94:95], s[0:1], 104")
        A("s_waitcnt lgkmcnt(0)")
        A("s_not_b32 s93, s96\nv_mov_b32 v0, s98\nv_mov_b32 v1, s93\nv_mov_b32 v16, 0\ns_mov_b64 exec, 1")
        A("global_atomic_umax v16, v0, s[94:95] offset:4 sc1\nglobal_atomic_umax v16, v1, s[94:95] offset:8 sc1")
        A(f"s_lshl_b32 s93, s2, 3\ns_add_u32 s93, s93, s{swave}\ns_cmp_lg_u32 s93, {int(os.environ.get('DBGW', '800'))}\ns_cbranch_scc1 {lab}")
        for i in range(1, NMARK):
            A(f"s_sub_u32 s93, s{70+2*i}, s70\nv_mov_b32 v0, s93\nglobal_store_dword v16, v0, s[94:95] offset:{8+4*i} sc1")
        A(f"s_sub_u32 s93, s98, s96\nv_mov_b32 v0, s93\nglobal_store_dword v16, v0, s[94:95] offset:{8+4*NMARK} sc1")
        A.label(lab)
        A("s_mov_b64 exec, -1")
    elif STAMP:
        A("s_waitcnt vmcnt(0) lgkmcnt(0)")
        A("s_memrealtime s[98:99]")
        A(f"s_memtime s[{70+2*(NMARK-1)}:{71+2*(NMARK-1)}]")
        A("s_load_dwordx2 s[94:95], s[0:1], 112")
        A(f"s_lshl_b32 s93, s2, 4\ns_add_u32 s93, s93, s{swave}\ns_lshl_b32 s93, s93, 6\ns_add_u32 s93, s93, {WS_STAMP + kidx*0x100000}")
        A("s_waitcnt lgkmcnt(0)")
        A("v_mov_b32 v0, s96\nv_mov_b32 v1, s97\nv_mov_b32 v2, s98\nv_mov_b32 v3, s99\nv_mov_b32 v16, s93")
        for i in range(NMARK):
            A(f"v_mov_b32 v{4+i}, s{70+2*i}")
        for q in range(4):
            A(f"global_store_dwordx4 v16, v[{4*q}:{4*q+3}], s[94:95] offset:{16*q}")

_pc = [0]
def table_base(A, sreg, name):
    _pc[0] += 1
    lab = f"L_pc{_pc[0]}"
    A(f"s_getpc_b64 s[{sreg}:{sreg+1}]")
    A.label(lab)
    A(f"s_add_u32 s{sreg}, s{sreg}, tables-{lab}")
    A(f"s_addc_u32 s{sreg+1}, s{sreg+1}, 0")

def bf16_bits(x):
    u = struct.unpack("<I", struct.pack("<f", x))[0]
    return ((u + 0x7FFF + ((u >> 16) & 1)) >> 16) & 0xFFFF
def f32_bits(x):
    return struct.unpack("<I", struct.pack("<f", x))[0]

def tables():
    w = np.zeros(TBL_END//4, dtype=np.uint32)
    def put(off, chunk, lane, j, val):
        w[(off + chunk*1024 + lane*16)//4 + j] = val
    for l in range(64):
        n, h = l & 31, l >> 5
        for u in range(2):
            for jj in range(4):
                val = 0
                if n == 16*h + 4*u + jj: val = 0x3F80
                if n == 16*h + 8 + 4*u + jj: val = 0x3F800000
                put(TBL_PERM, u, l, jj, val)
        for s_ in range(4):
            for q in range(4):
                m = 8*s_ + 4*h + q
                th = 2*math.pi*((n*m) % 32)/32
                c, sn = math.cos(th), math.sin(th)
                if abs(c) < 1e-12: c = 0.0
                if abs(sn) < 1e-12: sn = 0.0
                put(TBL_F, s_, l, q, bf16_bits(c) | bf16_bits(sn) << 16)
                put(TBL_F, 4+s_, l, q, bf16_bits(-sn) | bf16_bits(c) << 16)
                th = 2*math.pi*(n*m)/1024
                put(TBL_T, s_, l, q, f32_bits(math.cos(th)))
                put(TBL_T, 4+s_, l, q, f32_bits(-math.sin(th)))
                th = 2*math.pi*(n + 32*m)/2048
                put(TBL_TT, s_, l, q, f32_bits(math.cos(th)))
                put(TBL_TT, 4+s_, l, q, f32_bits(-math.sin(th)))
    L = [".p2align 8", ".type tables,@object", "tables:"]
    for i in range(0, len(w), 8):
        L.append(".long " + ",".join(hex(int(x)) for x in w[i:i+8]))
    L.append(f".size tables, {TBL_END}")
    return "\n".join(L)
```

```python
import os, struct, math
import numpy as np
STAMP = int(os.environ.get("STAMP", "0"))
WS_NONCE = 0
WS_EG = 0x10000
WS_HT = 0x100000
WS_Z1 = 0x1000000
WS_Z3 = 0x1400000
WS_WT = 0x1800000
WS_XB = 0x2000000
WS_STAMP = 0x2800000
SPIN_MAX = 200000
TBL_PERM = 0
TBL_F = 2048
TBL_T = TBL_F + 8192
TBL_TT = TBL_T + 8192
TBL_END = TBL_TT + 8192

NMARK = 10
DIAGC = int(os.environ.get('DIAGC', '0'))
TM = 's_memtime' if DIAGC else 's_memrealtime'
def stamp_begin(A):
    if STAMP:
        A("s_memrealtime s[96:97]")
        A("s_memtime s[70:71]")
        for i in range(1, NMARK):
            A(f"s_mov_b64 s[{70+2*i}:{71+2*i}], 0")

def mark(A, i, wait=True):
    if STAMP in (3, 4):
        if i == int(os.environ.get("DIAGM", "0")):
            A(f"{TM} s[72:73]\ns_waitcnt lgkmcnt(0)")
    elif STAMP:
        A(f"s_memtime s[{70+2*i}:{71+2*i}]")
        if wait:
            A("s_waitcnt lgkmcnt(0)")

def stamp_end(A, kidx, swave):
    if STAMP == 4:
        import random
        lab = f"L_se{random.randrange(1 << 30)}"
        m, k = int(os.environ.get("DIAGM", "0")), int(os.environ.get("DIAGK", "4"))
        dw, st = int(os.environ.get("DW", "0")), os.environ.get("DIAGS", "max")
        if m == 9:
            A("s_waitcnt vmcnt(0)\ns_memrealtime s[72:73]")
        if m == 0:
            A("s_waitcnt lgkmcnt(0)\ns_mov_b32 s72, s96")
        A("s_load_dwordx2 s[94:95], s[0:1], 112")
        A(f"s_waitcnt lgkmcnt(0)\ns_cmp_lg_u32 s{swave}, {dw}\ns_cbranch_scc1 {lab}")
        A(f"s_lshl_b32 s93, s2, 3\ns_add_u32 s93, s93, {WS_STAMP}\nv_mov_b32 v0, s96\nv_mov_b32 v1, s72\nv_mov_b32 v2, s93")
        A("global_store_dwordx2 v2, v[0:1], s[94:95] sc1")
        A(f"s_cmp_lg_u32 s2, 100\ns_cbranch_scc1 {lab}")
        A.label(lab + "w")
        A(f"s_memrealtime s[98:99]\ns_waitcnt lgkmcnt(0)\ns_sub_u32 s98, s98, s96\ns_cmp_lt_u32 s98, 4800\ns_cbranch_scc1 {lab}w")
        A(f"v_mbcnt_lo_u32_b32 v3, -1, 0\nv_mbcnt_hi_u32_b32 v3, -1, v3\nv_lshlrev_b32 v3, 5, v3\nv_add_u32 v3, {WS_STAMP}, v3")
        A("global_load_dwordx4 v[4:7], v3, s[94:95] sc1\nglobal_load_dwordx4 v[8:11], v3, s[94:95] offset:16 sc1\ns_waitcnt vmcnt(0)")
        A("s_sub_u32 s93, s96, 2000")
        for r in range(4, 12):
            A(f"v_subrev_u32 v{r}, s93, v{r}")
        op = "max" if st == "max" else "min"
        A("v_min_u32 v4, v4, v6\nv_min3_u32 v4, v4, v8, v10")
        A(f"v_{op}_u32 v5, v5, v7\nv_{op}3_u32 v5, v5, v9, v11")
        A(f"s_mov_b32 s92, -1\ns_mov_b32 s91, {0 if op == 'max' else -1}")
        for l in range(64):
            A(f"v_readlane_b32 s90, v4, {l}\ns_min_u32 s92, s92, s90\nv_readlane_b32 s90, v5, {l}\ns_{op}_u32 s91, s91, s90")
        A(f"s_sub_u32 s93, s91, s92\ns_mul_i32 s93, s93, {k}\ns_min_u32 s93, s93, 50000\ns_add_u32 s93, s93, 5000")
        A.label(lab + "x")
        A(f"s_memrealtime s[98:99]\ns_waitcnt lgkmcnt(0)\ns_sub_u32 s98, s98, s96\ns_cmp_lt_u32 s98, s93\ns_cbranch_scc1 {lab}x")
        A.label(lab)
    elif STAMP == 3:
        import random
        lab = f"L_se{random.randrange(1 << 30)}"
        m, k = int(os.environ.get("DIAGM", "0")), int(os.environ.get("DIAGK", "6000"))
        if m == 9:
            A(f"s_waitcnt vmcnt(0)\n{TM} s[72:73]")
        A(f"s_waitcnt lgkmcnt(0)\ns_lshl_b32 s93, s2, 3\ns_add_u32 s93, s93, s{swave}\ns_cmp_lg_u32 s93, {int(os.environ.get('DBGW', '800'))}\ns_cbranch_scc1 {lab}")
        if m and DIAGC:
            A(f"s_sub_u32 s93, s72, s70\ns_mul_i32 s93, s93, {k}\ns_lshr_b32 s93, s93, 6\ns_min_u32 s93, s93, 100000")
        elif m:
            A(f"s_sub_u32 s93, s72, s96\ns_mul_i32 s93, s93, {k}\ns_min_u32 s93, s93, 100000")
        else:
            A(f"s_mov_b32 s93, {k}")
        A.label(lab + "x")
        A(f"s_memrealtime s[98:99]\ns_waitcnt lgkmcnt(0)\ns_sub_u32 s98, s98, s96\ns_cmp_lt_u32 s98, s93\ns_cbranch_scc1 {lab}x")
        A.label(lab)
    elif STAMP == 2:
        import random
        lab = f"L_se{random.randrange(1 << 30)}"
        A("s_waitcnt vmcnt(0) lgkmcnt(0)")
        A("s_memrealtime s[98:99]")
        A(f"s_memtime s[{70+2*(NMARK-1)}:{71+2*(NMARK-1)}]")
        A("s_load_dwordx2 s[94:95], s[0:1], 104")
        A("s_waitcnt lgkmcnt(0)")
        A("s_not_b32 s93, s96\nv_mov_b32 v0, s98\nv_mov_b32 v1, s93\nv_mov_b32 v16, 0\ns_mov_b64 exec, 1")
        A("global_atomic_umax v16, v0, s[94:95] offset:4 sc1\nglobal_atomic_umax v16, v1, s[94:95] offset:8 sc1")
        A(f"s_lshl_b32 s93, s2, 3\ns_add_u32 s93, s93, s{swave}\ns_cmp_lg_u32 s93, {int(os.environ.get('DBGW', '800'))}\ns_cbranch_scc1 {lab}")
        for i in range(1, NMARK):
            A(f"s_sub_u32 s93, s{70+2*i}, s70\nv_mov_b32 v0, s93\nglobal_store_dword v16, v0, s[94:95] offset:{8+4*i} sc1")
        A(f"s_sub_u32 s93, s98, s96\nv_mov_b32 v0, s93\nglobal_store_dword v16, v0, s[94:95] offset:{8+4*NMARK} sc1")
        A.label(lab)
        A("s_mov_b64 exec, -1")
    elif STAMP:
        A("s_waitcnt vmcnt(0) lgkmcnt(0)")
        A("s_memrealtime s[98:99]")
        A(f"s_memtime s[{70+2*(NMARK-1)}:{71+2*(NMARK-1)}]")
        A("s_load_dwordx2 s[94:95], s[0:1], 112")
        A(f"s_lshl_b32 s93, s2, 4\ns_add_u32 s93, s93, s{swave}\ns_lshl_b32 s93, s93, 6\ns_add_u32 s93, s93, {WS_STAMP + kidx*0x100000}")
        A("s_waitcnt lgkmcnt(0)")
        A("v_mov_b32 v0, s96\nv_mov_b32 v1, s97\nv_mov_b32 v2, s98\nv_mov_b32 v3, s99\nv_mov_b32 v16, s93")
        for i in range(NMARK):
            A(f"v_mov_b32 v{4+i}, s{70+2*i}")
        for q in range(4):
            A(f"global_store_dwordx4 v16, v[{4*q}:{4*q+3}], s[94:95] offset:{16*q}")

_pc = [0]
def table_base(A, sreg, name):
    _pc[0] += 1
    lab = f"L_pc{_pc[0]}"
    A(f"s_getpc_b64 s[{sreg}:{sreg+1}]")
    A.label(lab)
    A(f"s_add_u32 s{sreg}, s{sreg}, tables-{lab}")
    A(f"s_addc_u32 s{sreg+1}, s{sreg+1}, 0")

def bf16_bits(x):
    u = struct.unpack("<I", struct.pack("<f", x))[0]
    return ((u + 0x7FFF + ((u >> 16) & 1)) >> 16) & 0xFFFF
def f32_bits(x):
    return struct.unpack("<I", struct.pack("<f", x))[0]

def tables():
    w = np.zeros(TBL_END//4, dtype=np.uint32)
    def put(off, chunk, lane, j, val):
        w[(off + chunk*1024 + lane*16)//4 + j] = val
    for l in range(64):
        n, h = l & 31, l >> 5
        for u in range(2):
            for jj in range(4):
                val = 0
                if n == 16*h + 4*u + jj: val = 0x3F80
                if n == 16*h + 8 + 4*u + jj: val = 0x3F800000
                put(TBL_PERM, u, l, jj, val)
        for s_ in range(4):
            for q in range(4):
                m = 8*s_ + 4*h + q
                th = 2*math.pi*((n*m) % 32)/32
                c, sn = math.cos(th), math.sin(th)
                if abs(c) < 1e-12: c = 0.0
                if abs(sn) < 1e-12: sn = 0.0
                put(TBL_F, s_, l, q, bf16_bits(c) | bf16_bits(sn) << 16)
                put(TBL_F, 4+s_, l, q, bf16_bits(-sn) | bf16_bits(c) << 16)
                th = 2*math.pi*(n*m)/1024
                put(TBL_T, s_, l, q, f32_bits(math.cos(th)))
                put(TBL_T, 4+s_, l, q, f32_bits(-math.sin(th)))
                th = 2*math.pi*(n + 32*m)/2048
                put(TBL_TT, s_, l, q, f32_bits(math.cos(th)))
                put(TBL_TT, 4+s_, l, q, f32_bits(-math.sin(th)))
    L = [".p2align 8", ".type tables,@object", "tables:"]
    for i in range(0, len(w), 8):
        L.append(".long " + ",".join(hex(int(x)) for x in w[i:i+8]))
    L.append(f".size tables, {TBL_END}")
    return "\n".join(L)
```

```python
import os
from asmlib import *
from common import *

E_ = lambda k, d: int(os.environ.get(k, str(d)))
XO, NP, RI, RJ = E_("XO", 3), E_("NP", 2), E_("RI", 0), E_("RJ", 0)
XO2, NP2 = E_("XO2", 2), E_("NP2", 1)
PRO = E_("PRO", 2)
HD = E_("HD", 12)
CD = E_("CD", 4)
NOAUX = E_("NOAUX", 0)
CODEPF = E_("CODEPF", 1)
NS = 3
R = 7
LA = E_('LA', 2)
FORCE_REMOTE = E_('FORCE_REMOTE', 0)
MF = "v_mfma_f32_32x32x16_bf16"
N0 = "neg_lo:[1,0,0] neg_hi:[1,0,0]"

AX, WR, WI, BX, LRE, LIM, BRE, BIM, CRE, CIM, LDT, DSK, OUT, DBG, WS = 4, 6, 8, 10, 12, 14, 16, 18, 20, 22, 24, 26, 28, 30, 32
WAVE, TI, TJ, NONCE, TBL = 34, 35, 36, 37, 38
S0, S1, S2, S3, S4 = 40, 44, 48, 52, 56
T0, T1, T2, T3, T4, T5, T6, T7, T8, T9 = range(60, 70)
MSK, CNT, LOCAL, PG = 90, 92, 100, 101
L_XCH = 122880
L_SYNC = 126976
L_AX = 131072
L_W = 147456
WS_CNT = 0x1000
CNT_A, CNT_B = WS_CNT, WS_CNT + 16*128
FLG_A, FLG_B = 0x84000, 0x86000
FLG_X = 0x8000
FLG_H = 0x60000
CPRO1 = E_("CPRO1", 2)
CPRO2 = E_("CPRO2", 2)
CTOUCH = E_("CTOUCH", 1)
FTOUCH = E_("FTOUCH", 1)
LBAT = E_("LBAT", 16)
XBF = E_("XBF", 1)
SLP_H, SLP_A = E_("SLP_H", 4), E_("SLP_A", 2)
NT = " nt" if E_("NT", 1) else ""
NTX = " nt"
OST = {0: "", 1: " nt", 2: " sc1", 3: " sc1 nt"}[E_("OST", 0)]
NTK = E_("NTK", 0)
NTC = " nt" if E_("NTC", 0) else ""


def sp(a):
    return f"s[{a}:{a+1}]"


def srd(A, d, base, soff=None, const=0, size=None, size_s=None):
    if soff is None and const == 0:
        A(f"s_mov_b32 s{d}, s{base}\ns_mov_b32 s{d+1}, s{base+1}")
    else:
        if soff is not None and const:
            A(f"s_add_u32 s{d+2}, s{soff}, {const}")
            o = f"s{d+2}"
        elif soff is not None:
            o = f"s{soff}"
        else:
            o = str(const)
        A(f"s_add_u32 s{d}, s{base}, {o}\ns_addc_u32 s{d+1}, s{base+1}, 0")
    if size_s is not None:
        A(f"s_sub_u32 s{d+2}, {size}, s{size_s}")
    else:
        A(f"s_mov_b32 s{d+2}, {size}")
    A(f"s_mov_b32 s{d+3}, 0x20000")


def r4(d):
    return f"s[{d}:{d+3}]"


_u = [0]


def uid(p):
    _u[0] += 1
    return f"L_{p}{_u[0]}"


def get_nonce(A, vt):
    l, d = uid("n"), uid("nd")
    A(f"v_mov_b32 v{vt}, 0")
    A.label(l)
    A(f"global_load_dword v{vt+1}, v{vt}, {sp(DBG)} sc1")
    A("s_waitcnt vmcnt(0)")
    A(f"v_readfirstlane_b32 s{NONCE}, v{vt+1}")
    A(f"s_cmp_eq_u32 s{NONCE}, 0")
    A(f"s_cbranch_scc1 {l}")


def signal(A, sshard, cnt, flg, expect, vt):
    d = uid("sg")
    A(f"s_lshl_b32 s{CNT}, s{sshard}, 7\ns_add_u32 s{CNT}, s{CNT}, {cnt}")
    A(f"v_mov_b32 v{vt}, s{CNT}\nv_mov_b32 v{vt+1}, 1")
    A("s_waitcnt vmcnt(0)")
    A("s_mov_b64 exec, 1")
    A(f"global_atomic_add v{vt+2}, v{vt}, v{vt+1}, {sp(WS)} sc0 sc1")
    A(f"v_add_u32 v{vt}, {flg - cnt}, v{vt}\nv_mov_b32 v{vt+1}, s{NONCE}")
    A("s_waitcnt vmcnt(0)")
    A(f"v_readfirstlane_b32 s{CNT}, v{vt+2}")
    A(f"s_add_u32 s{CNT}, s{CNT}, 1\ns_cmp_lg_u32 s{CNT}, {expect}")
    A(f"s_cbranch_scc1 {d}")
    A(f"global_store_dword v{vt}, v{vt+1}, {sp(WS)} sc1")
    A.label(d)
    A("s_mov_b64 exec, -1")


def set_flag(A, soff, vt):
    A(f"v_mov_b32 v{vt}, s{soff}\nv_mov_b32 v{vt+1}, s{NONCE}")
    A("s_waitcnt vmcnt(0)")
    A("s_mov_b64 exec, 1")
    A(f"global_store_dword v{vt}, v{vt+1}, {sp(WS)} sc1")
    A("s_mov_b64 exec, -1")


def wait_cnt(A, vaddr, vt, sleep):
    l, d = uid("w"), uid("wd")
    A(f"s_mov_b32 s{CNT}, 0")
    A.label(l)
    A(f"global_load_dword v{vt}, v{vaddr}, {sp(WS)} sc1")
    A("s_waitcnt vmcnt(0)")
    A(f"v_cmp_ne_u32 vcc, s{NONCE}, v{vt}")
    A(f"s_cbranch_vccz {d}")
    if sleep:
        A(f"s_sleep {sleep}")
    A(f"s_add_u32 s{CNT}, s{CNT}, 1\ns_cmp_lt_u32 s{CNT}, {SPIN_MAX}")
    A(f"s_cbranch_scc1 {l}")
    A.label(d)


F, T = 192, 224


import struct as _st


def fl(x):
    return hex(_st.unpack("<I", _st.pack("<f", x))[0])


def lane_float(A, vn, vh, t):
    A(f"v_and_b32 v{t}, 31, v1\nv_cvt_f32_u32 v{t}, v{t}\nv_lshrrev_b32 v{t+1}, 5, v1\nv_lshlrev_b32 v{t+1}, 2, v{t+1}\nv_cvt_f32_u32 v{t+1}, v{t+1}")


def make_F(A, t):
    lane_float(A, None, None, t)
    A(f"v_mul_f32 v{t+1}, v{t}, v{t+1}\nv_mul_f32 v{t+1}, {fl(1/32)}, v{t+1}")
    for i in range(16):
        c = 8*(i >> 2) + (i & 3)
        a = t + 2 + 3*(i & 1)
        A(f"v_fmamk_f32 v{a}, v{t}, {fl(c/32)}, v{t+1}\nv_fract_f32 v{a}, v{a}")
        A(f"v_cos_f32 v{a+1}, v{a}\nv_sin_f32 v{a+2}, v{a}")
        A(f"v_cvt_pk_bf16_f32 v{F+i}, v{a+1}, v{a+2}\nv_cvt_pk_bf16_f32 v{F+16+i}, -v{a+2}, v{a+1}")


def make_T(A, dst, t, half):
    lane_float(A, None, None, t)
    if not half:
        A(f"v_mul_f32 v{t+1}, v{t}, v{t+1}\nv_mul_f32 v{t+1}, {fl(1/1024)}, v{t+1}")
    else:
        A(f"v_mul_f32 v{t}, {fl(1/2048)}, v{t}\nv_fmamk_f32 v{t+1}, v{t+1}, {fl(1/64)}, v{t}")
    for i in range(16):
        c = 8*(i >> 2) + (i & 3)
        a = t + 2 + (i & 1)
        if not half:
            A(f"v_fmamk_f32 v{a}, v{t}, {fl(c/1024)}, v{t+1}")
        else:
            A(f"v_add_f32 v{a}, {fl(c/64)}, v{t+1}")
        A(f"v_cos_f32 v{dst+i}, v{a}\nv_sin_f32 v{dst+16+i}, -v{a}")


def stage1(A, src, D, stride=4):
    for c in range(2):
        for s_ in range(4):
            cc = "0" if s_ == 0 else v(D+16*c, 16)
            A(f"{MF} {v(D+16*c,16)}, {v(src+stride*s_,4)}, {v(F+16*c+4*s_,4)}, {cc}")


def twiddle(A, D, dst, tmp):
    for i in range(16):
        re, im, tr, ti = D+i, D+16+i, T+i, T+16+i
        t = tmp + 2*(i & 3)
        A(f"v_mul_f32 v{t}, v{re}, v{tr}\nv_mul_f32 v{t+1}, v{re}, v{ti}")
        A(f"v_fma_f32 v{t}, -v{im}, v{ti}, v{t}\nv_fmac_f32 v{t+1}, v{im}, v{tr}")
        A(f"v_cvt_pk_bf16_f32 v{dst+i}, v{t}, v{t+1}")


def stage2(A, src, D):
    for c in range(2):
        for s_ in range(4):
            cc = "0" if s_ == 0 else v(D+16*c, 16)
            A(f"{MF} {v(D+16*c,16)}, {v(F+16*c+4*s_,4)}, {v(src+4*s_,4)}, {cc}")


W_ = T6
NBW = 2048*513*2
SQ, SO, ST = 184, 185, 186
VA1, VA2, VA8, VLIN = 4, 5, 6, 7
_ph = [0]


def l_arrive(A):
    _ph[0] += 1
    A(f"v_mov_b32 v{ST+4}, {_ph[0]}")
    A(f"s_mov_b64 exec, 1\nds_write_b32 v{SO}, v{ST+4}\ns_mov_b64 exec, -1")
    return _ph[0]


def l_check(A, n, delta=0):
    l, d = uid("lc"), uid("lcd")
    if delta:
        A(f"v_add_u32 v{ST+5}, {delta}, v{SQ}")
    A.label(l)
    A(f"ds_read_b128 {v(ST,4)}, v{ST+5 if delta else SQ}\ns_waitcnt lgkmcnt(0)")
    A(f"v_min3_u32 v{ST}, v{ST}, v{ST+1}, v{ST+2}\nv_min_u32 v{ST}, v{ST}, v{ST+3}")
    A(f"v_readfirstlane_b32 s{CNT}, v{ST}")
    A(f"s_cmp_ge_u32 s{CNT}, {n}")
    A(f"s_cbranch_scc1 {d}")
    A(f"s_sleep 1\ns_branch {l}")
    A.label(d)


def l_sync(A):
    l_check(A, l_arrive(A))


def aux_setup(A):
    srd(A, S2, WR, size=NBW)
    srd(A, S3, WI, size=NBW)
    A(f"s_and_b32 s{T0}, s2, 31\ns_lshr_b32 s{T1}, s2, 5\ns_lshl_b32 s{T1}, s{T1}, 7\ns_add_u32 s{T0}, s{T0}, s{T1}")
    A(f"s_lshl_b32 s{T1}, s{W_}, 5\ns_add_u32 s{T7}, s{T0}, s{T1}\ns_lshl_b32 s{T0}, s{T7}, 12")
    srd(A, AX, AX, T0, 0, 0x1000)
    A("v_lshlrev_b32 v2, 4, v1\nv_xor_b32 v3, 128, v2")
    A(f"s_lshl_b32 s{T8}, s{W_}, 12\ns_add_u32 s{T8}, s{T8}, {L_AX}")
    A(f"s_and_b32 s{T0}, s2, 7\ns_bfe_u32 s{T1}, s2, 0x10003\ns_bfe_u32 s{T2}, s2, 0x20004\ns_lshr_b32 s{T3}, s2, 6")
    A(f"s_lshr_b32 s{T4}, s{T0}, 1\ns_lshl_b32 s{T4}, s{T4}, 3\ns_lshl_b32 s{T5}, s{T1}, 2\ns_add_u32 s{T4}, s{T4}, s{T5}")
    A(f"s_and_b32 s{T5}, s{T0}, 1\ns_lshl_b32 s{T5}, s{T5}, 1\ns_add_u32 s{T4}, s{T4}, s{T5}\ns_lshl_b32 s{T4}, s{T4}, 5")
    A(f"s_lshl_b32 s{T5}, s{T2}, 3\ns_add_u32 s{T4}, s{T4}, s{T5}\ns_lshl_b32 s{T5}, s{W_}, 1\ns_add_u32 s{T4}, s{T4}, s{T5}\ns_mul_i32 s{T4}, s{T4}, 1026")
    A(f"s_lshl_b32 s{T5}, s{T3}, 8\ns_add_u32 s{T9}, s{T4}, s{T5}")
    A("v_bfe_u32 v8, v1, 4, 1\nv_mul_u32_u24 v8, 32832, v8")
    A(f"v_lshrrev_b32 v9, 5, v1\ns_mov_b32 s{T5}, 1050624\nv_mul_lo_u32 v9, s{T5}, v9\nv_add_u32 v8, v8, v9")
    A(f"v_and_b32 v9, 15, v1\ns_lshl_b32 s{T5}, s{W_}, 1\nv_xor_b32 v9, s{T5}, v9")
    A("v_lshl_add_u32 v18, v9, 4, v8\nv_xor_b32 v9, 1, v9\nv_lshl_add_u32 v19, v9, 4, v8\nv_add_u32 v19, 1026, v19")
    A(f"s_bfe_u32 s{T4}, s2, 0x20005\ns_lshl_b32 s{T4}, s{T4}, 8\ns_bfe_u32 s{T5}, s2, 0x10004\ns_lshl_b32 s{T5}, s{T5}, 6\ns_add_u32 s{T4}, s{T4}, s{T5}")
    A(f"s_bfe_u32 s{T5}, s2, 0x10003\ns_lshl_b32 s{T5}, s{T5}, 7\ns_add_u32 s{T4}, s{T4}, s{T5}\ns_and_b32 s{T5}, s2, 7\ns_lshl_b32 s{T5}, s{T5}, 2\ns_add_u32 s{T4}, s{T4}, s{T5}")
    A(f"v_bfe_u32 v8, v1, 3, 2\nv_add_u32 v8, s{T4}, v8\nv_bfe_u32 v9, v1, 2, 1\nv_lshl_add_u32 v8, v9, 5, v8\nv_bfe_u32 v9, v1, 1, 1\nv_lshl_add_u32 v8, v9, 10, v8")
    A("v_sub_u32 v9, 2048, v8\nv_and_b32 v9, 2047, v9\nv_and_b32 v10, 1, v1\nv_cmp_eq_u32 vcc, 1, v10\nv_cndmask_b32 v8, v8, v9, vcc")
    A(f"v_mul_u32_u24 v17, 1026, v8\ns_lshr_b32 s{T4}, s2, 7\ns_lshl_b32 s{T4}, s{T4}, 10\nv_add_u32 v17, s{T4}, v17")


def aux_issue(A, vm):
    for c in range(2):
        A(f"s_add_u32 m0, s{T8}, {c*2048}")
        A(f"s_mov_b32 s{CNT}, {c*2048}")
        for u in range(2):
            vm.op(f"buffer_load_dwordx4 v{2+c}, {r4(AX)}, s{CNT} offen offset:{u*1024}{NT} lds", "aux")
    for bb in range(2):
        for arr in range(2):
            A(f"s_add_u32 m0, s{T8}, {L_W - L_AX + bb*2048 + arr*1024}")
            vm.op(f"buffer_load_dwordx4 v{18+bb}, {r4(S2 if arr == 0 else S3)}, s{T9} offen{NT} lds", "aux")
    nw = uid("nw")
    A(f"s_cmp_lg_u32 s{W_}, 3\ns_cbranch_scc1 {nw}")
    A("s_mov_b32 exec_hi, 0")
    A(f"buffer_load_ushort v{WSP}, v17, {r4(S2)}, 0 offen{NT}")
    A(f"buffer_load_ushort v{WSP+1}, v17, {r4(S3)}, 0 offen{NT}")
    A("s_mov_b64 exec, -1")
    A.label(nw)


WSP, IN, D, MID, TMP = 88, 24, 40, 72, 168
DY, W, TT = 72, 104, 136
M_, SPC, CJ, SGN = T0, T1, T2, T3
AUXK = E_("AUXK", 14)
GATE = E_("GATE", 1)
LPRIO, LPRIO2 = E_('LPRIO', 3), E_('LPRIO2', 3)
L_IMG = 98304
LIMG_FREE = 2


def img(i):
    ka = 8*(i >> 2) + (i & 3)
    return (VA1, ka*1024) if i < 8 else (VA8, 0) if i == 8 else (VA2, (27 - ka)*1024)


def aux_pre(A):
    A(f"v_mov_b32 v{SQ}, {L_SYNC + 16}\ns_lshl_b32 s{T4}, s{W_}, 2\nv_add_u32 v{SO}, s{T4}, v{SQ}")
    A("v_and_b32 v8, 31, v1\nv_lshrrev_b32 v9, 5, v1\nv_and_b32 v10, 1, v1")
    A(f"v_lshrrev_b32 v11, 1, v8\nv_lshlrev_b32 v{VA1}, 6, v11\nv_lshl_add_u32 v{VA1}, v10, 4, v{VA1}\nv_lshl_add_u32 v{VA1}, v9, 12, v{VA1}")
    A(f"v_add_u32 v11, v11, v10\nv_lshlrev_b32 v11, 6, v11\nv_lshl_add_u32 v11, v10, 4, v11\nv_lshl_add_u32 v11, v9, 12, v11\nv_sub_u32 v{VA2}, {5120 + 48}, v11")
    for r in (VA1, VA2):
        A(f"v_bfe_u32 v11, v{r}, 7, 1\nv_lshlrev_b32 v11, 5, v11\nv_xor_b32 v{r}, v{r}, v11")
    A(f"v_add_u32 v{VA8}, 11264, v{VA2}\nv_and_b32 v{VA8}, 0x3fff, v{VA8}")
    A(f"s_add_u32 s{T4}, s{T4}, {L_IMG}")
    for r in (VA1, VA2, VA8):
        A(f"v_add_u32 v{r}, s{T4}, v{r}")
    A(f"v_bfe_u32 v11, v1, 3, 1\nv_lshlrev_b32 v11, 5, v11\nv_xor_b32 v{VLIN}, v2, v11")

    A("v_bfe_u32 v12, v1, 2, 1\nv_mul_u32_u24 v12, 2176, v12")
    A("v_bfe_u32 v13, v1, 3, 1\nv_lshl_add_u32 v12, v13, 6, v12\nv_lshl_add_u32 v12, v9, 8, v12")
    A("v_bfe_u32 v13, v1, 4, 1\nv_lshl_add_u32 v12, v13, 5, v12\nv_and_b32 v13, 3, v1\nv_lshl_add_u32 v12, v13, 3, v12")
    A(f"v_add_u32 v12, s{T8}, v12\nv_xor_b32 v13, 128, v12")
    A(f"s_lshl_b32 s{T4}, s2, 14\ns_lshl_b32 s{T5}, s{W_}, 12\ns_add_u32 s{T4}, s{T4}, s{T5}")
    srd(A, S0, WS, T4, WS_Z1, 0x1000)
    srd(A, S1, WS, T4, WS_Z3, 0x1000)
    A(f"v_and_b32 v14, 7, v1\nv_lshrrev_b32 v15, 3, v1\nv_xor_b32 v16, v14, v15\nv_lshlrev_b32 v16, 4, v16\nv_lshl_add_u32 v16, v14, 11, v16")
    A(f"s_lshr_b32 s{T4}, s{W_}, 1\ns_lshl_b32 s{T4}, s{T4}, 7\ns_and_b32 s{T5}, s{W_}, 1\ns_lshl_b32 s{T5}, s{T5}, 3\ns_add_u32 s{T4}, s{T4}, s{T5}\ns_add_u32 s{T4}, s{T4}, {L_W}")
    A(f"v_add_u32 v16, s{T4}, v16")
    A("v_lshlrev_b32 v15, 16, v15\nv_lshl_add_u32 v15, v14, 4, v15")
    A(f"s_lshl_b32 s{T4}, s{T3}, 7\ns_lshr_b32 s{T5}, s{W_}, 1\ns_lshl_b32 s{T5}, s{T5}, 6\ns_add_u32 s{T4}, s{T4}, s{T5}")
    A(f"s_and_b32 s{T5}, s{W_}, 1\ns_lshl_b32 s{T5}, s{T5}, 2\ns_add_u32 s{T4}, s{T4}, s{T5}\ns_lshl_b32 s{T4}, s{T4}, 13")
    A(f"s_lshl_b32 s{T5}, s{T0}, 10\ns_add_u32 s{T4}, s{T4}, s{T5}\ns_lshl_b32 s{T5}, s{T1}, 9\ns_add_u32 s{T4}, s{T4}, s{T5}\ns_lshl_b32 s{T5}, s{T2}, 7\ns_add_u32 s{T4}, s{T4}, s{T5}")
    srd(A, S4, WS, T4, WS_WT, 0x400000, T4)
    make_F(A, 104)
    make_T(A, T, 104, 0)


def aux_hook(A, vm, k):
    if k == 5:
        make_T(A, TT, 104, 1)
    if k == 7:
        A("v_mov_b32 v20, 0")
        vm.op(f"global_load_dword v21, v20, {sp(DBG)} sc1", "nonce")
    if k == AUXK:
        aux_issue(A, vm)


def a1_task(A):
    RR = lambda arr, kind: 104 + (arr*4 + kind)*2
    y = uid("sg")
    A(f"v_readfirstlane_b32 s{NONCE}, v21\ns_cmp_lg_u32 s{NONCE}, 0\ns_cbranch_scc1 {y}")
    get_nonce(A, 20)
    A.label(y)
    A("s_waitcnt vmcnt(4)")
    mark(A, 6)
    for s_ in range(4):
        for u in range(2):
            A(f"ds_read_b64_tr_b16 {v(IN+4*s_+2*u,2)}, v{12+u} offset:{s_*512}")
    A("s_waitcnt lgkmcnt(0)")
    stage1(A, IN, D)
    twiddle(A, D, MID, TMP)
    stage2(A, MID, D)
    A(f"s_mov_b32 s{T4}, 0x05040100\ns_mov_b32 s{T5}, 0x07060302")
    A(f"s_lshl_b32 s{CNT}, s{W_}, 12\ns_add_u32 s{CNT}, s{CNT}, {L_IMG}\nv_add_u32 v8, s{CNT}, v{VLIN}")
    for i in range(16):
        A(f"v_cvt_pk_bf16_f32 v{MID+i}, v{D+i}, v{D+16+i}")
        a, o = img(i)
        A(f"ds_write_b32 v{a}, v{MID+i} offset:{o}")
    A("s_waitcnt vmcnt(0) lgkmcnt(0)")
    l_sync(A)
    for u in range(4):
        A(f"ds_read_b128 {v(MID+4*u,4)}, v8 offset:{u*1024}")
    for arr in range(2):
        for kind in range(4):
            A(f"ds_read_b64 {v(RR(arr,kind),2)}, v16 offset:{arr*1024 + kind*256}")
    for r in (VA1, VA2, VA8):
        A(f"v_add_u32 v{r}, {L_AX - L_IMG}, v{r}")
    A(f"v_lshlrev_b32 v{WSP}, 16, v{WSP}\nv_lshlrev_b32 v{WSP+1}, 16, v{WSP+1}\nv_lshlrev_b32 v9, 1, v1")
    A(f"v_add_f32_dpp v{WSP+2}, v{WSP}, v{WSP} quad_perm:[1,0,3,2] row_mask:0xf bank_mask:0xf")
    A(f"v_subrev_f32_dpp v{WSP+3}, v{WSP+1}, v{WSP+1} quad_perm:[1,0,3,2] row_mask:0xf bank_mask:0xf")
    A(f"v_mul_f32 v{WSP+2}, 0.5, v{WSP+2}\nv_mul_f32 v{WSP+3}, 0.5, v{WSP+3}")
    A(f"v_cvt_pk_bf16_f32 v{WSP}, v{WSP+2}, v{WSP+3}")
    A("s_waitcnt lgkmcnt(0)")
    p = l_arrive(A)
    assert p == LIMG_FREE
    for kap in range(4):
        o = 120 + 4*kap
        for e in range(2):
            for h2 in range(2):
                kind = e + 2*h2
                A(f"v_perm_b32 v{o+2*e+h2}, v{RR(1,kind)+kap//2}, v{RR(0,kind)+kap//2}, s{T4 + kap % 2}")
    if GATE:
        l_check(A, 1, -16)
    for u in range(4):
        A(f"buffer_store_dwordx4 {v(MID+4*u,4)}, v2, {r4(S0)}, 0 offen offset:{u*1024} sc1")
    for kap in range(4):
        A(f"s_mov_b32 s{CNT}, {kap*8192}")
        A(f"buffer_store_dwordx4 {v(120+4*kap,4)}, v15, {r4(S4)}, s{CNT} offen sc1")
    nw = uid("nw")
    A(f"s_cmp_lg_u32 s{W_}, 3\ns_cbranch_scc1 {nw}")
    A(f"s_lshr_b32 s{T4}, s2, 7\ns_sub_u32 s{T4}, 513, s{T4}\ns_lshl_b32 s{T4}, s{T4}, 13\ns_and_b32 s{T5}, s2, 127\ns_lshl_b32 s{T5}, s{T5}, 6\ns_add_u32 s{T4}, s{T4}, s{T5}")
    srd(A, S4, WS, T4, WS_WT, 64)
    A("s_mov_b32 exec_lo, 0x55555555\ns_mov_b32 exec_hi, 0")
    A(f"buffer_store_dword v{WSP}, v9, {r4(S4)}, 0 offen sc1")
    A("s_mov_b64 exec, -1")
    A.label(nw)
    mark(A, 2)
    A(f"s_and_b32 s{M_}, s2, 7\ns_lshl_b32 s{M_}, s{M_}, 5\ns_lshr_b32 s{T4}, s2, 3\ns_add_u32 s{M_}, s{M_}, s{T4}")
    A(f"s_lshr_b32 s{T4}, s{W_}, 1\ns_xor_b32 s{T4}, s{T4}, s{W_}\ns_and_b32 s{T4}, s{T4}, 1")
    A(f"s_or_b32 s{T5}, s{T4}, s{M_}\ns_cmp_eq_u32 s{T5}, 0\ns_cselect_b32 s{SPC}, 1, 0")
    A(f"s_lshl_b32 s{T5}, s{M_}, 1\ns_add_u32 s{T4}, s{T4}, s{T5}")
    A(f"s_lshr_b32 s{T5}, s{W_}, 1\ns_sub_u32 s{T9}, 513, s{T5}\ns_cmp_eq_u32 s{SPC}, 1\ns_cselect_b32 s{T4}, s{T9}, s{T4}\ns_cselect_b32 s{T5}, 0, s{T5}")
    A(f"s_lshl_b32 s{CJ}, s{T5}, 31\ns_or_b32 s{SGN}, s{CJ}, 0x3f800000\ns_lshl_b32 s{T4}, s{T4}, 13")
    srd(A, S2, WS, T4, WS_WT, 0x2000)
    A(f"s_lshl_b32 s{T4}, s{W_}, 20\ns_lshl_b32 s{T5}, s{M_}, 6\ns_add_u32 s{T4}, s{T4}, s{T5}")
    srd(A, S3, WS, T4, WS_Z1, 0x100000, T5)
    srd(A, S4, WS, T4, WS_Z3, 0x100000, T5)
    A("v_lshrrev_b32 v8, 2, v1\nv_lshlrev_b32 v8, 14, v8\nv_and_b32 v9, 3, v1\nv_lshrrev_b32 v10, 4, v1\nv_xor_b32 v9, v9, v10\nv_lshl_add_u32 v14, v9, 4, v8")
    A(f"v_and_b32 v8, 31, v1\nv_bfe_u32 v9, v1, 2, 2\nv_xor_b32 v9, s{W_}, v9\nv_lshlrev_b32 v9, 4, v9\nv_lshl_add_u32 v9, v8, 6, v9")
    A(f"v_lshrrev_b32 v8, 5, v1\nv_lshl_add_u32 v9, v8, 11, v9\nv_add_u32 v15, {L_AX}, v9")
    A(f"s_lshl_b32 s{T4}, s{W_}, 13\ns_add_u32 s{T4}, s{T4}, {L_AX}\nv_add_u32 v16, s{T4}, v2")
    A(f"s_xor_b32 s{T5}, s{T4}, {3 << 13}\ns_cmp_eq_u32 s{SPC}, 1\ns_cselect_b32 s{T5}, s{T4}, s{T5}\nv_add_u32 v17, s{T5}, v2")
    A(f"v_add_u32 v18, s{T8}, v2")
    for kk in range(16):
        A(f"v_pk_mul_f32 {v(TT+2*kk,2)}, {sp(CJ)}, {v(TT+2*kk,2)} op_sel:[1,0]")


def a2_loads(A):
    for u in range(4):
        A(f"s_add_u32 m0, s{T8}, {u*1024}\ns_mov_b32 s{T4}, {u << 18}")
        A(f"buffer_load_dwordx4 v14, {r4(S3)}, s{T4} offen sc1 lds")
    A(f"s_movk_i32 s{T4}, 0x1000")
    for it in range(8):
        A(f"buffer_load_dwordx4 {v(W+4*it,4)}, v2, {r4(S2)}, {'0' if it < 4 else f's{T4}'} offen offset:{(it & 3)*1024} sc1")


def aux_rest(A, vm):
    def phase(cnt, flg):
        A("s_waitcnt vmcnt(0)")
        if E_("AM", 0) and cnt == CNT_A:
            mark(A, 5)
        p = l_arrive(A)
        x = uid("ph")
        A(f"s_cmp_lg_u32 s{W_}, 0\ns_cbranch_scc1 {x}")
        l_check(A, p)
        y, pl_, nok = uid("sg"), uid("sp"), uid("nok")
        A(f"s_and_b32 s{T4}, s2, 15\ns_lshl_b32 s{T5}, s{T4}, 7\ns_add_u32 s{T5}, s{T5}, {cnt}")
        A(f"s_add_u32 s{MSK}, s{WS}, s{T5}\ns_addc_u32 s{MSK+1}, s{WS+1}, 0\ns_mov_b32 s{T5}, 1")
        A(f"s_atomic_add s{T5}, {sp(MSK)}, 0x0 glc")
        A(f"s_lshl_b32 s{T4}, s{T4}, 2\ns_add_u32 s{T4}, s{T4}, {flg}\nv_lshl_add_u32 v20, v1, 7, s{T4}\nv_mov_b32 v21, s{NONCE}")
        A(f"s_and_b32 s{T4}, s2, 63\ns_lshl_b32 s{T4}, s{T4}, 7\ns_add_u32 s{T4}, s{T4}, {flg}")
        A("s_waitcnt lgkmcnt(0)")
        A(f"s_cmp_lg_u32 s{T5}, 15\ns_cbranch_scc1 {y}")
        A(f"global_store_dword v20, v21, {sp(WS)} sc1")
        A.label(y)
        if E_("AM", 0) and cnt == CNT_A:
            mark(A, 6)
        A(f"s_add_u32 s{MSK}, s{WS}, s{T4}\ns_addc_u32 s{MSK+1}, s{WS+1}, 0\ns_mov_b32 s{T4}, s{NONCE}\ns_mov_b32 s{T5}, s{NONCE}\ns_mov_b32 s{CNT}, 0")
        A(f"s_branch {pl_}")
        A.label(nok)
        A(f"s_add_u32 s{CNT}, s{CNT}, 1\ns_cmp_ge_u32 s{CNT}, {SPIN_MAX}\ns_cbranch_scc1 {x}")
        if SLP_A:
            A(f"s_sleep {SLP_A}")
        A.label(pl_)
        A(f"s_load_dwordx16 s[4:19], {sp(MSK)}, 0x0 glc\ns_waitcnt lgkmcnt(0)")
        for q in range(8):
            A(f"s_cmp_eq_u64 s[{4+2*q}:{5+2*q}], {sp(T4)}\ns_cbranch_scc0 {nok}")
        A.label(x)
        l_sync(A)
    A("s_barrier\ns_barrier")
    A(f"s_setprio {LPRIO}")
    a1_task(A)
    phase(CNT_A, FLG_A)
    A(f"s_setprio {LPRIO2}")
    a2_loads(A)
    mark(A, 7)
    A("s_waitcnt vmcnt(8)")
    if E_("AM", 0):
        mark(A, 1)
    l_sync(A)
    INS = 72
    for s_ in range(4):
        A(f"ds_read_b128 {v(INS+4*s_,4)}, v15 offset:{s_*4096}")
    A("s_waitcnt lgkmcnt(0)")
    if E_("AM", 0) == 2:
        mark(A, 2)
    p6 = l_arrive(A)
    A(f"s_lshl_b32 s{T4}, s{SPC}, 31\ns_or_b32 s{T4}, s{T4}, s{CJ}")
    fl, nwr = uid("fft"), uid("nwr")
    A.label(fl)
    for i in range(16):
        A(f"v_xor_b32 v{IN+i}, s{T4}, v{INS+i}")
    stage1(A, IN, D)
    twiddle(A, D, IN, TMP)
    stage2(A, IN, D)
    l_check(A, p6)
    if E_("AM", 0) == 2:
        mark(A, 5)
    A(f"s_cmp_eq_u32 s{SPC}, 2\ns_cbranch_scc1 {nwr}")
    for c in range(8):
        A(f"ds_write_b128 v16, {v(D+4*c,4)} offset:{c*1024}")
    A(f"s_cmp_eq_u32 s{SPC}, 0\ns_cbranch_scc1 {nwr}")
    A(f"s_mov_b32 s{SPC}, 2\ns_mov_b32 s{T4}, 0\ns_branch {fl}")
    A.label(nwr)
    A("s_waitcnt lgkmcnt(0)")
    l_sync(A)
    for c in range(8):
        A(f"ds_read_b128 {v(DY+4*c,4)}, v17 offset:{c*1024}")
    A("s_waitcnt vmcnt(0) lgkmcnt(0)")
    if E_("AM", 0):
        mark(A, 4)
    p8 = l_arrive(A)
    for i in range(16):
        w = W + 2*i
        r1, i1, r2, i2, Ar, Ai, Or, Oi = (TMP + 8*(i & 1) + c for c in range(8))
        A(f"v_lshlrev_b32 v{r1}, 16, v{w}\nv_and_b32 v{i1}, 0xffff0000, v{w}")
        A(f"v_lshlrev_b32 v{r2}, 16, v{w+1}\nv_and_b32 v{i2}, 0xffff0000, v{w+1}")
        Dr, Di, Gr, Gi = r1, i1, r2, i2
        Xr, Xi, Yr, Yi, rho, sg = D+i, D+16+i, DY+i, DY+16+i, TT+i, TT+16+i
        A(f"v_add_f32 v{Ar}, v{r1}, v{r2}\nv_add_f32 v{Ai}, v{i1}, v{i2}")
        A(f"v_sub_f32 v{Dr}, v{r1}, v{r2}\nv_sub_f32 v{Di}, v{i1}, v{i2}")
        A(f"v_mul_f32 v{Gr}, v{sg}, v{Xr}\nv_mul_f32 v{Gi}, v{sg}, v{Xi}")
        A(f"v_mul_f32 v{Or}, v{Ar}, v{Xr}\nv_mul_f32 v{Oi}, v{Ar}, v{Xi}")
        A(f"v_fma_f32 v{Gr}, -v{rho}, v{Yi}, v{Gr}\nv_fmac_f32 v{Gi}, v{rho}, v{Yr}")
        A(f"v_fma_f32 v{Or}, -v{Ai}, v{Xi}, v{Or}\nv_fmac_f32 v{Oi}, v{Ai}, v{Xr}")
        A(f"v_fmac_f32 v{Or}, v{Dr}, v{Gr}\nv_fmac_f32 v{Oi}, v{Dr}, v{Gi}")
        A(f"v_fma_f32 v{Or}, -v{Di}, v{Gi}, v{Or}\nv_fmac_f32 v{Oi}, v{Di}, v{Gr}")
        A(f"v_cvt_pk_bf16_f32 v{IN+i}, v{Oi}, v{Or}")
    if E_("AM", 0) == 2:
        mark(A, 6)
    stage1(A, IN, D)
    twiddle(A, D, IN, TMP)
    stage2(A, IN, D)
    A(f"s_lshr_b32 s{T4}, s{CJ}, 16")
    l_check(A, p8)
    for s_ in range(4):
        for r in range(4):
            i = 4*s_ + r
            A(f"v_cvt_pk_bf16_f32 v{IN+i}, v{D+i}, v{D+16+i}\nv_xor_b32 v{IN+i}, s{T4}, v{IN+i}")
        A(f"ds_write_b128 v15, {v(IN+4*s_,4)} offset:{s_*4096}")
    A("s_waitcnt lgkmcnt(0)")
    if E_("AM", 0) == 2:
        mark(A, 7)
    l_sync(A)
    for u in range(4):
        A(f"ds_read_b128 {v(IN+4*u,4)}, v18 offset:{u*1024}")
    for u in range(4):
        A(f"s_mov_b32 s{T4}, {u << 18}\ns_waitcnt lgkmcnt({3-u})")
        A(f"buffer_store_dwordx4 {v(IN+4*u,4)}, v14, {r4(S4)}, s{T4} offen sc1")
    mark(A, 3)
    A(f"s_lshl_b32 s{T4}, s{T7}, 14")
    srd(A, S0, OUT, T4, 0, 0x4000)
    A("v_and_b32 v8, 31, v1\nv_lshrrev_b32 v9, 5, v1\nv_lshlrev_b32 v14, 2, v8\nv_lshl_add_u32 v14, v9, 9, v14")
    A(f"s_mov_b32 s{T4}, 0x35000000")
    for k in range(32):
        A(f"v_mul_f32 v{T+k}, s{T4}, v{T+k}")
    phase(CNT_B, FLG_B)
    mark(A, 8)
    A(f"s_mov_b32 m0, s{T8}")
    for u in range(4):
        A(f"buffer_load_dwordx4 v{VLIN}, {r4(S1)}, 0 offen offset:{u*1024} sc1 lds")
    A("s_waitcnt vmcnt(0)")
    l_sync(A)
    for i in range(16):
        a, o = img(i)
        A(f"ds_read_b32 v{IN+i}, v{a} offset:{o}")
    A("s_waitcnt lgkmcnt(0)")
    stage1(A, IN, D)
    twiddle(A, D, IN, TMP)
    stage2(A, IN, D)
    A(f"s_movk_i32 s{T4}, 0x2000")
    O = 72
    for i in range(16):
        o = O + 2*i
        A(f"v_cvt_pk_bf16_f32 v{o+1}, v{D+16+i}, v{D+i}")
        A(f"v_lshlrev_b32 v{o}, 16, v{o+1}\nv_and_b32 v{o+1}, 0xffff0000, v{o+1}")
        off = (i >> 2)*1024 + (i & 3)*128
        A(f"buffer_store_dword v{o}, v14, {r4(S0)}, 0 offen offset:{off}{OST}")
        A(f"buffer_store_dword v{o+1}, v14, {r4(S0)}, s{T4} offen offset:{off}{OST}")


def cmul_sq(A, d, a, t):
    A(f"v_mul_f32 {v(t)}, {v(a+1)}, {v(a+1)}")
    A(f"v_mul_f32 {v(t+1)}, {v(a)}, {v(a+1)}")
    A(f"v_fma_f32 {v(d)}, {v(a)}, {v(a)}, -{v(t)}")
    A(f"v_add_f32 {v(d+1)}, {v(t+1)}, {v(t+1)}")


def horner(A, dr, di, L, pr, pi, er, ei, t):
    assert dr not in (pr, pi) and di not in (pr, pi)
    A(f"v_fma_f32 {v(t)}, {v(L)}, {v(pr)}, {v(er)}")
    A(f"v_fma_f32 {v(t+1)}, {v(L)}, {v(pi)}, {v(ei)}")
    A(f"v_fma_f32 {v(dr)}, -{v(L+1)}, {v(pi)}, {v(t)}")
    A(f"v_fma_f32 {v(di)}, {v(L+1)}, {v(pr)}, {v(t+1)}")


def loader(A, name, kidx):
    RA, RB, ROT, M0B, SOF, RV = 12, 20, 24, 25, 26, 176
    A(f"s_sub_u32 s{W_}, s{WAVE}, 4")
    A("v_lshrrev_b32 v2, 5, v1\nv_bfe_u32 v3, v1, 3, 2")
    A("v_and_b32 v4, 1, v3\nv_lshrrev_b32 v5, 1, v3")
    A("v_lshlrev_b32 v6, 5, v2\nv_lshl_add_u32 v6, v4, 4, v6\nv_add_u32 v6, v6, v5")
    A(f"s_lshr_b32 s{T0}, s{W_}, 1\ns_lshl_b32 s{T1}, s{T0}, 6\ns_and_b32 s{T2}, s{W_}, 1\ns_lshl_b32 s{T2}, s{T2}, 3\ns_add_u32 s{T1}, s{T1}, s{T2}")
    A(f"v_add_u32 v6, s{T1}, v6\nv_lshlrev_b32 v6, 11, v6")
    A(f"s_lshl_b32 s{T1}, s{T0}, 5")
    A(f"v_lshl_add_u32 v7, v2, 3, v3\nv_add_u32 v7, s{T1}, v7\nv_lshlrev_b32 v7, 11, v7")
    A("v_and_b32 v4, 7, v1\nv_lshrrev_b32 v5, 4, v1\nv_xor_b32 v4, v4, v5\nv_lshlrev_b32 v4, 4, v4")
    A("v_xor_b32 v5, 64, v4")
    for u in range(4):
        ch = 4 if u % 2 == 0 else 5
        A(f"v_add_u32 v{RV+u}, v6, v{ch}")
        if u:
            A(f"v_add_u32 v{RV+u}, {u*4096 - u*1024}, v{RV+u}")
        A(f"v_add_u32 v{RV+4+u}, v7, v{ch}")
        if u:
            A(f"v_add_u32 v{RV+4+u}, {(16*(u>>1) + 4*(u&1))*2048 - u*1024}, v{RV+4+u}")
    A(f"s_and_b32 s{T4}, s2, 7\ns_mul_i32 s{T4}, s{T4}, {XO*128}")
    A(f"s_add_u32 s{T0}, s{TI}, s{TJ}\ns_and_b32 s{T0}, s{T0}, {NP-1}\ns_mul_i32 s{T0}, s{T0}, {2048//NP}\ns_add_u32 s{T4}, s{T4}, s{T0}")
    if RI or RJ:
        A(f"s_mul_i32 s{T0}, s{TI}, {RI*128}\ns_add_u32 s{T4}, s{T4}, s{T0}\ns_mul_i32 s{T0}, s{TJ}, {RJ*128}\ns_add_u32 s{T4}, s{T4}, s{T0}")
    A(f"s_lshl_b32 s{T0}, s{TI}, 18\ns_lshl_b32 s{T1}, s{TJ}, 17")
    A("s_waitcnt lgkmcnt(0)")
    A(f"s_lshl_b32 s{M0B}, s{W_}, 12\ns_mov_b32 s{ROT}, s{T4}")
    srd(A, RA, BX, T0, 0, 0x40000)
    A(f"s_bitcmp1_b32 s{W_}, 0\ns_cselect_b32 s{T2}, s{BIM}, s{BRE}\ns_cselect_b32 s{T3}, s{BIM+1}, s{BRE+1}")
    srd(A, RB, T2, T1, 0, 0x20000)
    mark(A, 5)
    vm = VmCounter(A)

    def issue(k):
        slot = k % NS
        A(f"s_add_u32 m0, s{M0B}, {slot*32768}")
        A(f"s_add_u32 s{SOF}, s{ROT}, {k*128}\ns_and_b32 s{SOF}, s{SOF}, 0x7ff")
        for u in range(4):
            vm.op(f"buffer_load_dwordx4 v{RV+u}, {r4(RA)}, s{SOF} offen offset:{u*1024}{NTX if k < NTK else ''} lds", ("st", k))
        A(f"s_add_u32 m0, s{M0B}, {slot*32768 + 16384}")
        for u in range(4):
            vm.op(f"buffer_load_dwordx4 v{RV+4+u}, {r4(RB)}, s{SOF} offen offset:{u*1024}{NTX if k < NTK else ''} lds", ("st", k))
    issue(0)
    issued = 1
    if not NOAUX:
        aux_setup(A)
        aux_pre(A)
    for k in range(-1, 16):
        if k >= 0:
            vm.wait_for(("st", k))
            A("s_barrier")
        if k in (0, 12):
            mark(A, 1 + k//4)
        while issued < min(16, k + LA + 1):
            issue(issued)
            issued += 1
        if not NOAUX and k >= 0:
            aux_hook(A, vm, k)
    assert issued == 16
    if NOAUX:
        A("s_barrier\ns_barrier")
    else:
        aux_rest(A, vm)
    stamp_end(A, kidx, WAVE)
    A("s_endpgm")


def gemm_waves(A, name, kidx):
    ACC = lambda T_, c: 64 + (T_*2 + c)*16
    FR = lambda X, f: 32 + X*16 + f*4
    AD = lambda st, op, ks: 128 + st*8 + op*4 + ks
    LAM, KC, L16, L128, L256 = 24, 26, 28, 30, 2
    WT_, WP = T8, T6
    A(f"s_lshr_b32 s{WT_}, s{WAVE}, 1\ns_and_b32 s{WP}, s{WAVE}, 1")
    A("v_and_b32 v6, 31, v1\nv_lshrrev_b32 v5, 5, v1")
    A("v_and_b32 v4, 0x13, v6")
    A("v_bfe_u32 v7, v6, 2, 1\nv_lshl_or_b32 v4, v7, 3, v4")
    A("v_bfe_u32 v7, v6, 3, 1\nv_lshl_or_b32 v4, v7, 2, v4")
    A(f"s_lshl_b32 s{T0}, s{TJ}, 6\ns_lshl_b32 s{T1}, s{WP}, 5\ns_add_u32 s{T0}, s{T0}, s{T1}")
    A(f"v_add_u32 v4, s{T0}, v4")
    A("v_lshlrev_b32 v7, 1, v4\nv_lshlrev_b32 v11, 4, v1")
    A("s_waitcnt lgkmcnt(0)")
    A(f"global_load_ushort v8, v7, {sp(LRE)}\nglobal_load_ushort v9, v7, {sp(LIM)}\nglobal_load_ushort v10, v7, {sp(LDT)}")
    nn = uid("nn")
    A(f"s_lshl_b32 s{T0}, s2, 3\ns_add_u32 s{T0}, s{T0}, s{WAVE}\ns_cmp_lg_u32 s{T0}, 1")
    A(f"s_cbranch_scc1 {nn}")
    A(f"s_load_dword s{T0}, {sp(WS)}, {WS_NONCE}")
    A(f"v_mov_b32 v16, 0\nv_and_b32 v17, 31, v1\nv_lshlrev_b32 v17, 7, v17\nv_add_u32 v17, {WS_CNT}, v17")
    A(f"global_store_dword v17, v16, {sp(WS)} sc1")
    A("s_waitcnt vmcnt(0) lgkmcnt(0)")
    A(f"s_add_u32 s{T0}, s{T0}, 1\ns_cmp_eq_u32 s{T0}, 0\ns_cselect_b32 s{T0}, 1, s{T0}")
    A(f"v_mov_b32 v17, s{T0}")
    A(f"s_mov_b64 exec, 1\nglobal_store_dword v16, v17, {sp(DBG)} sc1")
    A(f"global_store_dword v16, v17, {sp(WS)} offset:{WS_NONCE}\ns_mov_b64 exec, -1")
    A.label(nn)
    if CODEPF:
        pf = uid("pf")
        A(f"s_cmp_lg_u32 s{WAVE}, 0")
        A(f"s_cbranch_scc1 {pf}")
        A(f"s_lshr_b32 s{T0}, s2, 3\ns_lshl_b32 s{T0}, s{T0}, 11\nv_and_b32 v12, 15, v1\nv_lshl_add_u32 v12, v12, 7, s{T0}")
        A(f"v_min_u32 v12, L_{name}_end-{name}, v12")
        pc = uid("pc")
        A(f"s_getpc_b64 {sp(T0)}")
        A.label(pc)
        A(f"s_sub_u32 s{T0}, s{T0}, {pc}-{name}\ns_subb_u32 s{T1}, s{T1}, 0")
        A(f"global_load_dword v247, v12, {sp(T0)}")
        A.label(pf)
    A("v_bfe_u32 v7, v6, 1, 3\nv_xor_b32 v7, v7, v5\nv_lshlrev_b32 v7, 4, v7\nv_lshl_add_u32 v7, v6, 7, v7")
    A(f"s_lshl_b32 s{T0}, s{WT_}, 13\ns_lshl_b32 s{T1}, s{WP}, 13\ns_add_u32 s{T1}, s{T1}, 16384")
    for ks in range(4):
        A(f"v_xor_b32 v12, {ks << 5}, v7")
        A(f"v_add_u32 v{AD(0,0,ks)}, s{T0}, v12\nv_add_u32 v{AD(0,1,ks)}, s{T1}, v12")
        A(f"v_add_u32 v{AD(1,0,ks)}, 0x10000, v{AD(0,0,ks)}\nv_add_u32 v{AD(1,1,ks)}, 0x10000, v{AD(0,1,ks)}")
    for r in range(64, 128, 2):
        A(f"v_mov_b64 v[{r}:{r+1}], 0")
    A(f"v_mov_b32 v34, {L_SYNC}\nv_mov_b64 v[36:37], 0\nv_mov_b64 v[38:39], 0")
    A("s_mov_b64 exec, 1\nds_write_b128 v34, v[36:39]\nds_write_b128 v34, v[36:39] offset:16\ns_mov_b64 exec, -1")
    A("v_lshlrev_b32 v12, 4, v5\nv_sub_u32 v12, v6, v12\nv_mov_b32 v13, 0x3f80\nv_mov_b32 v14, 1.0")
    for c in range(8):
        A(f"v_cmp_eq_u32 vcc, {c}, v12\nv_cmp_eq_u32 {sp(T0)}, {c+8}, v12")
        A(f"v_cndmask_b32 v{248+c}, 0, v13, vcc\nv_cndmask_b32 v{248+c}, v{248+c}, v14, {sp(T0)}")
    srd(A, S0, WS, None, WS_EG, 0x40000)
    srd(A, S1, WS, None, WS_HT, 0x800000)
    A("s_waitcnt vmcnt(0)")
    A("v_lshlrev_b32 v8, 16, v8\nv_lshlrev_b32 v9, 16, v9\nv_lshlrev_b32 v10, 16, v10")
    A("v_mul_f32 v10, 0x3fb8aa3b, v10\nv_exp_f32 v10, v10")
    A("v_cvt_pk_bf16_f32 v10, v10, v10\nv_lshlrev_b32 v10, 16, v10")
    A("v_mul_f32 v12, v10, v8\nv_mul_f32 v13, v10, v9")
    A("v_mul_f32 v12, 0x3fb8aa3b, v12\nv_exp_f32 v12, v12")
    A("v_mul_f32 v13, 0.15915494, v13\nv_rndne_f32 v14, v13\nv_sub_f32 v13, v13, v14")
    A("v_cos_f32 v14, v13\nv_sin_f32 v15, v13")
    A(f"v_mul_f32 v{LAM}, v12, v14\nv_mul_f32 v{LAM+1}, v12, v15")
    A(f"v_add_f32 v12, -1.0, v{LAM}")
    A("v_mul_f32 v13, v8, v8\nv_fma_f32 v13, v9, v9, v13\nv_rcp_f32 v13, v13")
    A("v_add_f32 v13, v13, v13")
    A(f"v_mul_f32 v14, v12, v8\nv_fma_f32 v14, v{LAM+1}, v9, v14\nv_mul_f32 v{KC}, v14, v13")
    A(f"v_mul_f32 v14, v{LAM+1}, v8\nv_fma_f32 v14, -v12, v9, v14\nv_mul_f32 v{KC+1}, v14, v13")
    L32 = 20
    cmul_sq(A, L16, LAM, 12)
    for _ in range(3):
        cmul_sq(A, L16, L16, 12)
    cmul_sq(A, L32, L16, 12)
    cmul_sq(A, L128, L32, 12)
    cmul_sq(A, L128, L128, 12)
    cmul_sq(A, L256, L128, 12)

    def reads(k, ks, which):
        slot = k % NS
        st, off = slot >> 1, (slot & 1)*32768
        X = ks & 1
        for f in which:
            op = 0 if f in (0, 3) else 1
            hi = 4096 if f in (2, 3) else 0
            A(f"ds_read_b128 {v(FR(X, f), 4)}, v{AD(st, op, ks)} offset:{off + hi}")

    def mfma(T_, c, X):
        a = FR(X, 0 if T_ == 0 else 3)
        b = FR(X, 1 if c == 0 else 2)
        A(f"{MF} {v(ACC(T_,c),16)}, {v(a,4)}, {v(b,4)}, {v(ACC(T_,c),16)}")
    A("s_waitcnt lgkmcnt(0)\ns_barrier")
    reads(0, 0, [0, 1, 2, 3])
    for k in range(16):
        for ks in range(4):
            X = ks & 1
            nk, nks = (k, ks+1) if ks < 3 else (k+1, 0)
            have = nk < 16
            if ks == 3:
                A("s_waitcnt lgkmcnt(0)\ns_barrier")
            else:
                A("s_waitcnt lgkmcnt(2)")
            if k == 12 and ks == 0:
                A("v_mov_b32 v12, 0")
                A(f"global_load_dword v13, v12, {sp(DBG)} sc1")
            mfma(0, 0, X)
            if have:
                reads(nk, nks, [0, 1])
            if ks != 3:
                A("s_waitcnt lgkmcnt(3)")
            mfma(0, 1, X)
            if have:
                reads(nk, nks, [2, 3])
            if ks != 3:
                A("s_waitcnt lgkmcnt(4)")
            mfma(1, 0, X)
            mfma(1, 1, X)
    mark(A, 1)
    U = lambda c, idx: ACC(idx >> 3, c) + 2*(idx & 7)
    bc_a = "op_sel_hi:[0,1,1]"
    bc_b = "op_sel:[1,0,0]"
    TT = 40

    def pk_step(L, dr, di, pr, pi, ur, ui):
        A(f"v_pk_fma_f32 {v(TT,2)}, {v(L,2)}, {v(pr,2)}, {v(ur,2)} {bc_a}")
        A(f"v_pk_fma_f32 {v(TT+2,2)}, {v(L,2)}, {v(pi,2)}, {v(ui,2)} {bc_a}")
        A(f"v_pk_fma_f32 {v(dr,2)}, {v(L,2)}, {v(pi,2)}, {v(TT,2)} {bc_b} {N0}")
        A(f"v_pk_fma_f32 {v(di,2)}, {v(L,2)}, {v(pr,2)}, {v(TT+2,2)} {bc_b}")
    A(f"s_lshl_b32 s{T0}, s{WP}, 10\ns_add_u32 s{T0}, s{T0}, {L_XCH}\ns_lshl_b32 s{T1}, s{WT_}, 4")
    A(f"v_lshl_add_u32 v14, v6, 5, s{T0}")
    A(f"v_lshl_add_u32 v15, v5, 3, v14\nv_add_u32 v15, s{T1}, v15")
    for idx in range(1, 16):
        pk_step(LAM, U(0, idx), U(1, idx), U(0, idx-1), U(1, idx-1), U(0, idx), U(1, idx))
    EA = (U(0, 15), U(1, 15))
    horner(A, 32, 33, L16, EA[0], EA[1], EA[0]+1, EA[1]+1, TT)
    A("ds_write_b64 v15, v[32:33]")
    A(f"s_sub_u32 s{T0}, s{TI}, 1\ns_lshl_b32 s{T0}, s{T0}, 14")
    A("v_lshlrev_b32 v16, 4, v4\nv_lshlrev_b32 v17, 14, v5\nv_sub_u32 v17, v16, v17")
    A(f"v_add_u32 v128, s{T0}, v17")
    A(f"s_lshl_b32 s{T0}, s{TI}, 14\nv_add_u32 v16, s{T0}, v16")
    A("v_lshlrev_b32 v17, 30, v5\nv_or_b32 v16, v16, v17")
    A("s_waitcnt lgkmcnt(0)\ns_barrier")
    SG = 144
    A(f"ds_read_b128 {v(SG,4)}, v14\nds_read_b128 {v(SG+4,4)}, v14 offset:16")
    nl, ng = uid("n"), uid("ng")
    A.label(nl)
    A("s_waitcnt vmcnt(0)")
    A(f"v_readfirstlane_b32 s{NONCE}, v13")
    A(f"s_cmp_lg_u32 s{NONCE}, 0")
    A(f"s_cbranch_scc1 {ng}")
    A(f"global_load_dword v13, v12, {sp(DBG)} sc1")
    A(f"s_branch {nl}")
    A.label(ng)
    P = 44
    A(f"v_mov_b32 v{P+2}, s{NONCE}\nv_mov_b32 v{P+3}, s{NONCE}")
    A(f"s_getreg_b32 s{T0}, hwreg(HW_REG_XCC_ID, 0, 4)\ns_lshl_b32 s{T1}, s{NONCE}, 4\ns_or_b32 s{LOCAL}, s{T0}, s{T1}\nv_mov_b32 v60, s{LOCAL}")
    A(f"s_lshr_b32 s{PG}, s{TJ}, 3")
    A(f"s_lshl_b32 s{T0}, s{TI}, 11\ns_add_u32 s{T0}, s{T0}, {FLG_X}\ns_lshl_b32 s{T1}, s{TJ}, 7\ns_add_u32 s{T1}, s{T1}, s{T0}\nv_mov_b32 v61, s{T1}")
    A(f"s_lshl_b32 s{T1}, s{PG}, 10\ns_add_u32 s{T0}, s{T0}, s{T1}\nv_and_b32 v62, 7, v1\nv_lshl_add_u32 v62, v62, 7, s{T0}")
    A("s_waitcnt lgkmcnt(0)")
    horner(A, 48, 49, L32, SG, SG+1, SG+2, SG+3, TT)
    horner(A, 50, 51, L32, 48, 49, SG+4, SG+5, TT)
    horner(A, P, P+1, L32, 50, 51, SG+6, SG+7, TT)
    np_ = uid("np")
    A(f"s_cmp_lg_u32 s{WT_}, 0")
    A(f"s_cbranch_scc1 {np_}")
    A(f"buffer_store_dwordx4 {v(P,4)}, v16, {r4(S0)}, 0 offen sc1")
    A(f"s_cmp_lg_u32 s{WP}, 0")
    A(f"s_cbranch_scc1 {np_}")
    A(f"s_mov_b64 exec, 1\nglobal_store_dword v61, v60, {sp(WS)} sc1\ns_mov_b64 exec, -1")
    A.label(np_)
    mark(A, 2)
    LB = 160
    A("v_mov_b32 v17, 0x40000000")
    for u in range(1, 8):
        A(f"v_subrev_u32 v{128+u}, {u*32768}, v128")
    for u in range(8):
        A(f"v_cmp_le_i32 vcc, 0, v{128+u}")
        A(f"v_cndmask_b32 v{136+u}, 0, v{P+2}, vcc")
        A(f"v_cndmask_b32 v{128+u}, v17, v{128+u}, vcc")
    def lbloads():
        for u in range(8):
            A(f"buffer_load_dwordx4 {v(LB+4*u,4)}, v{128+u}, {r4(S0)}, 0 offen sc1")
        A(f"global_load_dword v63, v62, {sp(WS)} sc1")
    A(f"s_lshl_b32 s{T0}, s{TI}, 1\ns_add_u32 s{T0}, s{T0}, s{WT_}\ns_lshl_b32 s{T0}, s{T0}, 12\ns_add_u32 s{T0}, s{T0}, {FLG_H}")
    A(f"s_lshl_b32 s{T1}, s{PG}, 11\ns_add_u32 s{T1}, s{T1}, s{T0}\nv_and_b32 v18, 15, v1\nv_lshl_add_u32 v18, v18, 7, s{T1}")
    A(f"s_lshl_b32 s{T1}, s{TJ}, 8\ns_add_u32 s{T0}, s{T0}, s{T1}\ns_lshl_b32 s{T1}, s{WP}, 7\ns_add_u32 s{T0}, s{T0}, s{T1}\nv_mov_b32 v19, s{T0}")
    if FTOUCH:
        A(f"global_load_dword v246, v18, {sp(WS)} sc1")
    if LBAT == 0:
        lbloads()
    O = 52
    PW = lambda idx: 208 + 2*idx
    A(f"v_mul_f32 v{O}, v{KC+1}, v{LAM+1}\nv_mul_f32 v{O+1}, v{KC+1}, v{LAM}")
    A(f"v_fma_f32 v{PW(0)}, v{KC}, v{LAM}, -v{O}\nv_fma_f32 v{PW(0)+1}, v{KC}, v{LAM+1}, v{O+1}")
    for idx in range(16):
        d = (U(0, idx), U(1, idx))
        A(f"v_pk_mul_f32 {v(O,2)}, {v(KC,2)}, {v(d[0],2)} op_sel_hi:[0,1]")
        A(f"v_pk_mul_f32 {v(O+2,2)}, {v(KC,2)}, {v(d[1],2)} op_sel_hi:[0,1] neg_lo:[1,0] neg_hi:[1,0]")
        if idx == 15:
            A(f"v_mov_b32 v56, v{d[0]}\nv_mov_b32 v57, v{d[1]}")
        if idx < 15:
            A(f"v_mul_f32 v58, v{PW(idx)+1}, v{LAM+1}\nv_mul_f32 v59, v{PW(idx)+1}, v{LAM}")
        A(f"v_pk_fma_f32 {v(O+2,2)}, {v(KC,2)}, {v(d[0],2)}, {v(O+2,2)} {bc_b} {N0}")
        A(f"v_pk_fma_f32 {v(d[0],2)}, {v(KC,2)}, {v(d[1],2)}, {v(O,2)} {bc_b} {N0}")
        A(f"v_mov_b64 {v(d[1],2)}, {v(O+2,2)}")
        if idx < 15:
            A(f"v_fma_f32 v{PW(idx+1)}, v{PW(idx)}, v{LAM}, -v58\nv_fma_f32 v{PW(idx+1)+1}, v{PW(idx)}, v{LAM+1}, v59")
        if idx + 1 == LBAT:
            lbloads()
    A(f"s_mov_b32 s{T9}, 0")
    pl, pd = uid("poll"), uid("polled")
    A.label(pl)
    A(f"s_mov_b64 {sp(T0)}, 0")
    for u in range(8):
        A(f"s_waitcnt vmcnt({8-u})")
        A(f"v_cmp_ne_u32 vcc, v{LB+4*u+2}, v{136+u}")
        A(f"s_or_b64 {sp(T0)}, {sp(T0)}, vcc")
        A(f"v_cmp_ne_u32 vcc, v{LB+4*u+3}, v{136+u}")
        A(f"s_or_b64 {sp(T0)}, {sp(T0)}, vcc")
    A(f"s_waitcnt vmcnt(0)\nv_xor_b32 v63, v60, v63\nv_cmp_lt_u32 vcc, 15, v63")
    A(f"s_or_b64 {sp(T0)}, {sp(T0)}, vcc")
    A(f"s_add_u32 s{T9}, s{T9}, 1")
    A(f"s_cmp_eq_u64 {sp(T0)}, 0")
    A(f"s_cbranch_scc1 {pd}")
    A(f"s_cmp_ge_u32 s{T9}, {SPIN_MAX}")
    A(f"s_cbranch_scc1 {pd}")
    lbloads()
    A(f"s_branch {pl}")
    A.label(pd)
    A(f"v_cmp_ne_u32 vcc, 0, v63\ns_cmp_eq_u64 vcc, 0\ns_cselect_b32 s{LOCAL}, {0 if FORCE_REMOTE else 1}, 0")
    mark(A, 3)
    A(f"v_mov_b32 v12, {L_SYNC}\ns_lshl_b32 s{T0}, s{WAVE}, 2\nv_add_u32 v13, s{T0}, v12\nv_mov_b32 v14, 1")
    A("s_mov_b64 exec, 1\nds_write_b32 v13, v14\ns_mov_b64 exec, -1")
    vm = VmCounter(A)
    if CTOUCH:
        ct = uid("ct")
        A(f"s_cmp_lt_u32 s{WAVE}, 2\ns_cbranch_scc1 {ct}")
        A(f"s_lshl_b32 s{T0}, s{PG}, 10\ns_bfe_u32 s{T1}, s2, 0x20001\ns_lshl_b32 s{T1}, s{T1}, 19\ns_add_u32 s{T0}, s{T0}, s{T1}")
        A(f"s_lshr_b32 s{T1}, s2, 3\ns_lshl_b32 s{T1}, s{T1}, 14\ns_add_u32 s{T0}, s{T0}, s{T1}")
        A(f"v_lshrrev_b32 v8, 3, v1\nv_lshlrev_b32 v8, 11, v8\nv_and_b32 v9, 7, v1\nv_lshl_add_u32 v8, v9, 7, v8\nv_add_u32 v8, s{T0}, v8")
        A(f"s_cmp_eq_u32 s{WP}, 0\ns_cselect_b32 s{T0}, s{CRE}, s{CIM}\ns_cselect_b32 s{T1}, s{CRE+1}, s{CIM+1}")
        A(f"global_load_dword v246, v8, {sp(T0)}")
        A.label(ct)
    H0, H1 = LB + 28, 48
    cur = (H0, H0+1)
    for u in range(6, -1, -1):
        d = (48, 49) if cur[0] == H0 else (H0, H0+1)
        horner(A, d[0], d[1], L256, cur[0], cur[1], LB+4*u, LB+4*u+1, TT)
        cur = d
    assert cur == (48, 49)
    A(f"v_mov_b32 v50, v48\nv_mov_b32 v51, v49")
    A(f"v_permlane32_swap_b32 v48, v50\nv_permlane32_swap_b32 v49, v51")
    PS = 192
    horner(A, PS, PS+1, L128, 50, 51, 48, 49, TT)
    for u in range(1, 4):
        horner(A, PS+2*u, PS+2*u+1, L32, PS+2*u-2, PS+2*u-1, SG+2*u-2, SG+2*u-1, TT)
    w0 = uid("wt0")
    A(f"s_cmp_eq_u32 s{WT_}, 0")
    A(f"s_cbranch_scc1 {w0}")
    A(f"v_mov_b64 {v(PS,2)}, {v(PS+4,2)}\nv_mov_b64 {v(PS+2,2)}, {v(PS+6,2)}")
    A.label(w0)
    A("v_cmp_eq_u32 vcc, 1, v5")
    G = 48
    A(f"v_cndmask_b32 v{G}, v{PS}, v{PS+2}, vcc")
    A(f"v_cndmask_b32 v{G+2}, v{PS+1}, v{PS+3}, vcc")
    horner(A, G+1, G+3, L16, G, G+2, 56, 57, TT)
    PK = lambda c, idx: 128 + 16*c + idx
    D = lambda c, X: 160 + 16*c if X == 0 else (192 if c == 0 else 32)
    A(f"s_lshl_b32 s{T0}, s{TI}, 1\ns_add_u32 s{T9}, s{T0}, s{WT_}\ns_lshl_b32 s{T0}, s{T9}, 18")
    A(f"s_lshl_b32 s{T1}, s{TJ}, 13\ns_add_u32 s{T0}, s{T0}, s{T1}\ns_lshl_b32 s{T1}, s{WP}, 11\ns_add_u32 s{T0}, s{T0}, s{T1}")

    def fix(idx):
        d = (U(0, idx), U(1, idx))
        pw = v(PW(idx), 2)
        A(f"v_pk_fma_f32 {v(d[0],2)}, {pw}, {v(G,2)}, {v(d[0],2)} {bc_a}")
        A(f"v_pk_fma_f32 {v(d[1],2)}, {pw}, {v(G+2,2)}, {v(d[1],2)} {bc_a} {N0}")
        A(f"v_pk_fma_f32 {v(d[0],2)}, {pw}, {v(G+2,2)}, {v(d[0],2)} {bc_b} {N0}")
        A(f"v_pk_fma_f32 {v(d[1],2)}, {pw}, {v(G,2)}, {v(d[1],2)} {bc_b} {N0}")
        A(f"v_cvt_pk_bf16_f32 v{PK(0,idx)}, v{d[0]}, v{d[0]+1}")
        A(f"v_cvt_pk_bf16_f32 v{PK(1,idx)}, v{d[1]}, v{d[1]+1}")

    def tr(X):
        for c in range(2):
            A(f"{MF} {v(D(c,X),16)}, {v(PK(c,8*X),4)}, v[248:251], 0")
            A(f"{MF} {v(D(c,X),16)}, {v(PK(c,8*X+4),4)}, v[252:255], {v(D(c,X),16)}")

    def st(X, c):
        A(f"s_add_u32 s{T1}, s{T0}, {X*131072 + c*4096}")
        q = 64 + (X*2 + c)*8
        for jj in range(8):
            A(f"v_cvt_pk_bf16_f32 v{q+jj}, v{D(c,X)+2*jj}, v{D(c,X)+2*jj+1}")
        A(f"buffer_store_dwordx4 {v(q,4)}, v11, {r4(S1)}, s{T1} offen sc1")
        A(f"buffer_store_dwordx4 {v(q+4,4)}, v11, {r4(S1)}, s{T1} offen offset:1024 sc1")
    for idx in range(8):
        fix(idx)
    tr(0)
    for idx in range(8, 12):
        fix(idx)
    st(0, 0)
    st(0, 1)
    for idx in range(12, 16):
        fix(idx)
    tr(1)
    st(1, 0)
    st(1, 1)
    mark(A, 4)
    M0B, RH, RCc, SH, SC = T7, T5, T4, T3, T2
    ACC2 = lambda nt: 32 + 16*nt
    CF = lambda X, nt: 96 + 16*X + 4*nt
    XR, CV = 128, 144
    HR = lambda s_: 148 + 4*(s_ % HD)
    for ks in range(4):
        A(f"v_xor_b32 v{20+ks}, {ks << 5}, v7")
        A(f"v_add_u32 v{24+ks}, 0x10000, v{20+ks}")
    A(f"s_lshl_b32 s{T0}, s{WP}, 3")
    A(f"v_lshl_add_u32 v17, v5, 2, s{T0}")
    A("v_lshlrev_b32 v28, 11, v17\nv_lshl_add_u32 v28, v6, 2, v28")
    A("v_lshlrev_b32 v29, 13, v17\nv_lshl_add_u32 v29, v6, 3, v29")
    A("v_lshlrev_b32 v30, 2, v6\nv_mov_b32 v2, v11")
    A(f"s_xor_b32 s{T0}, s{WT_}, s{PG}\ns_xor_b32 s{T0}, s{T0}, 1\ns_lshl_b32 s{T0}, s{T0}, 6\ns_add_u32 s{T0}, s{T0}, s{WP}")
    A(f"v_lshrrev_b32 v8, 3, v1\nv_lshl_add_u32 v8, v8, 1, s{T0}\nv_lshlrev_b32 v8, 11, v8")
    A("v_and_b32 v9, 7, v1\nv_lshrrev_b32 v10, 4, v1\nv_xor_b32 v9, v9, v10\nv_lshlrev_b32 v9, 4, v9\nv_xor_b32 v10, 64, v9")
    for u in range(4):
        A(f"v_add_u32 v{CV+u}, v8, v{9 + (u & 1)}")
        if u:
            A(f"v_add_u32 v{CV+u}, {u*(16*2048 - 1024)}, v{CV+u}")
    A(f"s_and_b32 s{T0}, s{TJ}, 7\ns_lshl_b32 s{T0}, s{T0}, 18\ns_lshl_b32 s{T1}, s{PG}, 10\ns_add_u32 s{T0}, s{T0}, s{T1}")
    srd(A, S2, CRE, T0, 0, 0x40000, T1)
    srd(A, S3, CIM, T0, 0, 0x40000, T1)
    A(f"s_lshl_b32 s{M0B}, s{WAVE}, 12")
    A(f"s_lshr_b32 s{RCc}, s{TI}, 2\ns_mul_i32 s{RCc}, s{RCc}, {XO2*128}")
    A(f"s_and_b32 s{T0}, s{TI}, {NP2-1}\ns_mul_i32 s{T0}, s{T0}, {1024//NP2}\ns_add_u32 s{RCc}, s{RCc}, s{T0}")
    A(f"s_lshl_b32 s{RH}, s{RCc}, 6")
    A(f"s_and_b32 s{T1}, s{TJ}, 7\ns_lshl_b32 s{T1}, s{T1}, 1\ns_add_u32 s{T1}, s{T1}, s{PG}\ns_lshl_b32 s{T1}, s{T1}, 7")
    A(f"s_lshl_b32 s{T0}, s{T9}, 17\ns_add_u32 s{T0}, s{T0}, s{T1}")
    srd(A, S4, BX, T0, 0, 0x20000, T1)
    A(f"s_add_u32 s{DSK}, s{DSK}, s{T1}\ns_addc_u32 s{DSK+1}, s{DSK+1}, 0")
    A(f"s_lshl_b32 s{T1}, s{T1}, 1\ns_add_u32 s{T1}, s{T1}, 4096\ns_lshl_b32 s{T0}, s{T9}, 19\ns_add_u32 s{T0}, s{T0}, s{T1}")
    A(f"s_add_u32 s{OUT}, s{OUT}, s{T0}\ns_addc_u32 s{OUT+1}, s{OUT+1}, 0\ns_sub_u32 s{LDT}, 0x80000, s{T1}")
    A(f"s_lshl_b32 s{T0}, s{TI}, 2\ns_add_u32 s{T0}, s{T0}, s{WAVE}\ns_lshl_b32 s{T0}, s{T0}, 17\ns_lshl_b32 s{T1}, s{PG}, 16\ns_add_u32 s{T0}, s{T0}, s{T1}")
    srd(A, S0, WS, T0, WS_HT, 0x10000)

    def cdma(g, us):
        for u in us:
            if u == 0:
                A(f"s_add_u32 m0, s{M0B}, {(g % R)*16384}")
                if g % 2 == 0:
                    A(f"s_add_u32 s{SC}, s{RCc}, {(g >> 1)*128}\ns_and_b32 s{SC}, s{SC}, 0x3ff")
            vm.op(f"buffer_load_dwordx4 v{CV+u}, {r4(S2 if g % 2 == 0 else S3)}, s{SC} offen offset:{u*1024}{NTC} lds", ("c", g))
    for g in range(CPRO1):
        cdma(g, range(4))
    A(f"v_mov_b32 v15, s{NONCE}")
    a, b = uid("rs"), uid("rd")
    A(f"s_waitcnt vmcnt({4*CPRO1})\ns_mov_b64 exec, 1\ns_cmp_eq_u32 s{LOCAL}, 0\ns_cbranch_scc1 {a}")
    A(f"global_store_dword v19, v15, {sp(WS)}\ns_branch {b}")
    A.label(a)
    A(f"global_store_dword v19, v15, {sp(WS)} sc1")
    A.label(b)
    A("s_mov_b64 exec, -1")
    for g in range(CPRO1, CPRO2):
        cdma(g, range(4))

    def arrive(b):
        A(f"v_mov_b32 v14, {b+2}")
        A("s_mov_b64 exec, 1\nds_write_b32 v13, v14\ns_mov_b64 exec, -1")

    def check(b, off=0):
        l, d = uid("ck"), uid("ckd")
        A.label(l)
        A("v_min3_u32 v15, v8, v9, v10\nv_min_u32 v15, v15, v11")
        A(f"v_readfirstlane_b32 s{T0}, v15")
        A(f"s_cmp_ge_u32 s{T0}, {b+2}")
        A(f"s_cbranch_scc1 {d}")
        A(f"ds_read_b128 v[8:11], v12 offset:{off}\ns_waitcnt lgkmcnt(0)")
        A(f"s_branch {l}")
        A.label(d)
    mark(A, 5)
    wait_cnt(A, 18, 8, SLP_H)
    vm.issued = []
    mark(A, 6)
    NK = 64

    def hload(s_):
        if s_ % 4 == 0:
            A(f"s_add_u32 s{SH}, s{RH}, {(s_ >> 2)*4096}\ns_and_b32 s{SH}, s{SH}, 0xffff")
        vm.op(f"buffer_load_dwordx4 {v(HR(s_),4)}, v2, {r4(S0)}, s{SH} offen offset:{(s_ & 3)*1024} sc1", ("h", s_))

    def rd2(s_, nts):
        g, ks = s_ >> 2, s_ & 3
        slot = g % R
        base = 20 if slot < 4 else 24
        for nt in nts:
            A(f"ds_read_b128 {v(CF(s_ & 1, nt),4)}, v{base+ks} offset:{(slot & 3)*16384 + nt*4096}")
    cg = CPRO2
    if cg >= 2:
        arrive(0)
    for s_ in range(HD):
        if s_ % 4 == 0 and cg < CD:
            cdma(cg, range(4))
            cg += 1
        hload(s_)
    while cg < CD:
        cdma(cg, range(4))
        cg += 1
    if CPRO2 < 2:
        vm.wait_for(("c", 1))
        arrive(0)
    if not NOAUX:
        A("ds_read_b128 v[8:11], v12 offset:16\ns_waitcnt lgkmcnt(0)")
        check(LIMG_FREE - 2, 16)
    A("ds_read_b128 v[8:11], v12\ns_waitcnt lgkmcnt(0)")
    check(0)
    rd2(0, range(4))
    have_c = lambda g: any(t == ("c", g) for t in vm.issued)

    def mf(s_, nt):
        c = "0" if s_ == 0 else v(ACC2(nt), 16)
        A(f"{MF} {v(ACC2(nt),16)}, {v(HR(s_),4)}, {v(CF(s_ & 1, nt),4)}, {c}")
    for s_ in range(NK):
        g, ks = s_ >> 2, s_ & 3
        nxt = s_ + 1
        more = nxt < NK
        wv = vm.wait_for(("h", s_), emit=False)
        arr = (s_ + 4) % 8 == 0 and s_ + 4 < NK
        if arr:
            gl = ((s_ + 4) >> 2) + 1
            if have_c(gl):
                wv = min(wv, vm.wait_for(("c", gl), emit=False))
        newgrp = more and nxt % 8 == 0
        fl = 1 if (s_ + 1) % 8 == 0 and more else 0
        if newgrp or not more:
            A(f"s_waitcnt vmcnt({wv}) lgkmcnt(0)")
            if newgrp:
                check(nxt >> 3)
                if nxt == 32:
                    mark(A, 7)
        else:
            A(f"s_waitcnt vmcnt({wv}) lgkmcnt(3)")
        extra = 0
        if arr:
            arrive((s_ + 4) >> 3)
            extra = 1
        full = newgrp or not more
        mf(s_, 0)
        if more:
            rd2(nxt, [0, 1])
        if not full:
            A(f"s_waitcnt lgkmcnt({4 + extra})")
        mf(s_, 1)
        if more:
            rd2(nxt, [2, 3])
        if not full:
            A(f"s_waitcnt lgkmcnt({5 + extra})")
        mf(s_, 2)
        if g + CD < NK//4:
            cdma(g + CD, [ks])
        if not full:
            A(f"s_waitcnt lgkmcnt({4 + extra})")
        mf(s_, 3)
        if s_ + HD < NK:
            hload(s_ + HD)
        if (s_ + 2) % 8 == 0 and s_ + 2 < NK:
            A("ds_read_b128 v[8:11], v12")
        if s_ == NK - 18:
            vm.op(f"global_load_dword v31, v30, {sp(DSK)}", "dsk")
        if NK - 17 <= s_ < NK - 1:
            e = s_ - (NK - 17)
            q, r = e >> 2, e & 3
            A(f"s_mov_b32 s{T0}, {q*32768 + (r >> 1)*4096}")
            vm.op(f"buffer_load_dword v{XR+e}, v28, {r4(S4)}, s{T0} offen offset:{(r & 1)*2048}", ("x", e))
    mark(A, 8)
    TG = T0
    A(f"s_mul_i32 s{TG}, s{NONCE}, 0x9e3779b1\ns_and_b32 s{TG}, s{TG}, 0xbfff0000\ns_or_b32 s{TG}, s{TG}, 0x20000000")
    A(f"s_lshl_b32 s{T4}, s{TI}, 4\ns_add_u32 s{T4}, s{T4}, s{TJ}\ns_lshl_b32 s{T4}, s{T4}, 2\ns_add_u32 s{T4}, s{T4}, s{WAVE}\ns_lshl_b32 s{T4}, s{T4}, 13")
    srd(A, S2, WS, T4, WS_XB, 0x2000)
    A(f"s_xor_b32 s{T4}, s{T4}, {8 << 15}")
    srd(A, S3, WS, T4, WS_XB, 0x2000)
    A(f"s_movk_i32 s{T4}, 0x1000")
    val = lambda n: ACC2(n & 1) + (n >> 1)
    TX, RX = 96, 180
    for gq in range(5):
        for c in range(4):
            n = 7*gq + 2*c
            lo = f"v{val(min(n, 31))}"
            hi = f"s{TG}" if c == 3 else f"v{val(min(n+1, 31))}"
            A(f"v_cvt_pk_bf16_f32 v{TX+4*gq+c}, {lo}, {hi}")
        A(f"buffer_store_dwordx4 {v(TX+4*gq,4)}, v2, {r4(S2)}, {'0' if gq < 4 else f's{T4}'} offen offset:{(gq & 3)*1024} sc1")

    def rx():
        for gq in range(5):
            A(f"buffer_load_dwordx4 {v(RX+4*gq,4)}, v2, {r4(S3)}, {'0' if gq < 4 else f's{T4}'} offen offset:{(gq & 3)*1024} sc1")
    if E_("XM", 0):
        mark(A, 3)
    A("s_waitcnt vmcnt(5)")
    if E_("XM", 0):
        mark(A, 5)
    A("v_lshlrev_b32 v8, 16, v31\nv_and_b32 v9, 0xffff0000, v31")
    YO = lambda e: 148 + 2*e
    for e in range(16):
        t = YO(e)
        A(f"v_lshlrev_b32 v{t}, 16, v{XR+e}\nv_and_b32 v{t+1}, 0xffff0000, v{XR+e}")
        A(f"v_pk_mul_f32 {v(t,2)}, {v(t,2)}, v[8:9]")
        A(f"v_cvt_pk_bf16_f32 v10, v{t}, v{t+1}")
        A(f"v_lshlrev_b32 v{t}, 16, v10\nv_and_b32 v{t+1}, 0xffff0000, v10")
        A(f"v_add_f32 v{t}, v{t}, v{ACC2(2)+e}\nv_add_f32 v{t+1}, v{t+1}, v{ACC2(3)+e}")
    A(f"s_mov_b32 s{S1}, s{OUT}\ns_mov_b32 s{S1+1}, s{OUT+1}\ns_mov_b32 s{S1+2}, s{LDT}\ns_mov_b32 s{S1+3}, 0x20000")
    xl, xd = uid("xl"), uid("xd")
    A(f"s_mov_b32 s{CNT}, 0")
    A(f"s_waitcnt vmcnt({E_('XW', 0)})")
    if E_("XM", 0):
        mark(A, 6)
    rx()
    A.label(xl)
    A("v_mov_b32 v10, 0")
    for gq in range(5):
        A(f"s_waitcnt vmcnt({4-gq})")
        A(f"v_bitop3_b32 v10, v10, v{RX+4*gq+3}, s{TG} bitop3:0xf6")
    A("v_cmp_lt_u32 vcc, 0xffff, v10")
    A(f"s_cbranch_vccz {xd}")
    A(f"s_add_u32 s{CNT}, s{CNT}, 1\ns_cmp_ge_u32 s{CNT}, {SPIN_MAX}")
    A(f"s_cbranch_scc1 {xd}")
    rx()
    A(f"s_branch {xl}")
    A.label(xd)
    if STAMP:
        A(f"s_add_u32 s74, s70, s{CNT}\ns_lshl_b32 s{CNT}, s{LOCAL}, 8\ns_add_u32 s74, s74, s{CNT}")
        mark(A, 4)
    for e in range(16):
        q, r = e >> 2, e & 3
        t = YO(e)
        for nt in range(2):
            n = 2*e + nt
            src = RX + 4*(n // 7) + (n % 7)//2
            if (n % 7) % 2 == 0:
                A(f"v_lshlrev_b32 v{10+nt}, 16, v{src}")
            else:
                A(f"v_and_b32 v{10+nt}, 0xffff0000, v{src}")
        A(f"v_pk_add_f32 {v(t,2)}, {v(t,2)}, v[10:11]")
        A(f"s_mov_b32 s{T4}, {(16*q + r)*8192}")
        A(f"buffer_store_dwordx2 {v(t,2)}, v29, {r4(S1)}, s{T4} offen{OST}")
    stamp_end(A, kidx, WAVE)


def gen_fused(A, name, kidx):
    A(f".globl {name}\n.p2align 8\n.type {name},@function")
    A.label(name)
    A("s_cmp_ge_u32 s2, 256")
    A(f"s_cbranch_scc1 L_{name}_end")
    A("s_load_dwordx16 s[4:19], s[0:1], 0")
    A("s_load_dwordx8 s[20:27], s[0:1], 64")
    A("s_load_dwordx4 s[28:31], s[0:1], 96")
    A("s_load_dwordx2 s[32:33], s[0:1], 112")
    stamp_begin(A)
    A("v_lshrrev_b32 v2, 6, v0\nv_and_b32 v1, 63, v0")
    A(f"v_readfirstlane_b32 s{WAVE}, v2")
    A(f"s_and_b32 s{T0}, s2, 7\ns_lshr_b32 s{T1}, s2, 3")
    A(f"s_lshr_b32 s{TI}, s{T0}, 1\ns_lshl_b32 s{TI}, s{TI}, 2\ns_lshr_b32 s{T2}, s{T1}, 3\ns_add_u32 s{TI}, s{TI}, s{T2}")
    A(f"s_and_b32 s{TJ}, s{T0}, 1\ns_lshl_b32 s{TJ}, s{TJ}, 3\ns_and_b32 s{T2}, s{T1}, 7\ns_add_u32 s{TJ}, s{TJ}, s{T2}")
    A(f"s_cmp_ge_u32 s{WAVE}, 4")
    A(f"s_cbranch_scc0 L_{name}_gemm")
    loader(A, name, kidx)
    A.label(f"L_{name}_gemm")
    gemm_waves(A, name, kidx)
    A.label(f"L_{name}_end")
    A("s_endpgm")
    return kdesc(name, 256)
```
